```python
import torch

def _softmax(x, axis=-1):
    return torch.softmax(x, dim=axis)

def _gelu(x):
    return torch.nn.functional.gelu(x, approximate='tanh')

def _silu(x):
    return torch.nn.functional.silu(x)

def _sigmoid(x):
    return torch.sigmoid(x)

def _layernorm(x, axis=-1, eps=1e-05):
    m = x.mean(dim=axis, keepdim=True)
    v = x.var(dim=axis, keepdim=True, unbiased=False)
    return (x - m) / torch.sqrt(v + eps)

def _scatter_add(tgt, idx, src, axis=0):
    return tgt.clone().index_add_(axis, idx, src)

def _segment_sum(src, seg, n):
    out = torch.zeros((n,) + src.shape[1:], dtype=src.dtype)
    return out.index_add_(0, seg, src)

def _pad(x, pw):
    flat = tuple((v for pair in reversed(pw) for v in pair))
    return torch.nn.functional.pad(x, flat)
kernel_name = 'adaLN_cond__spectral_gfnet__glu_gated_reglu__prompt'

def setup_inputs():

    _w = lambda a: (lambda t: t.to(torch.bfloat16) if t.is_floating_point() else t)(torch.as_tensor(a))

    def _A_setup():
        B, S, D = (1, 2048, 576)
        Df = D // 2 + 1
        return {'x': _w((lambda *s: torch.randn(*s, dtype=torch.bfloat16) * 0.05)(B, S, D)), 'w_r': _w((lambda *s: torch.randn(*s, dtype=torch.bfloat16) * 3.2)(S, Df) * 0.02), 'w_i': _w((lambda *s: torch.randn(*s, dtype=torch.bfloat16) * 3.2)(S, Df) * 0.02)}
    _A_in = _A_setup()

    def _B_setup():
        B, S, D, F = (1, 2048, 576, 4608)
        return {'x': _w((lambda *s: torch.randn(*s, dtype=torch.bfloat16) * 0.05)(B, S, D)), 'W_gate': _w((lambda *s: torch.randn(*s, dtype=torch.bfloat16) * 0.4)(D, F) * (2.0 / D) ** 0.5), 'W_up': _w((lambda *s: torch.randn(*s, dtype=torch.bfloat16) * 0.4)(D, F) * (2.0 / D) ** 0.5), 'W_down': _w((lambda *s: torch.randn(*s, dtype=torch.bfloat16) * 0.4)(F, D) * (1.0 / F) ** 0.5)}
    _B_in = _B_setup()
    return {'A_x': _A_in['x'], 'A_w_r': _A_in['w_r'], 'A_w_i': _A_in['w_i'], 'B_x': _B_in['x'], 'B_W_gate': _B_in['W_gate'], 'B_W_up': _B_in['W_up'], 'B_W_down': _B_in['W_down'], 'c': _w((lambda *s: torch.randn(*s, dtype=torch.bfloat16) * 0.1)(1, 576) * 8.0), 'w_mod': _w((lambda *s: torch.randn(*s, dtype=torch.bfloat16) * 0.1)(576, 6 * 576) * 576 ** (-0.5) * 8.0)}

def reference(A_x, A_w_r, A_w_i, B_x, B_W_gate, B_W_up, B_W_down, c, w_mod):

    def _A_ref(x, w_r, w_i):
        B, S, D = x.shape
        X = (lambda x, axes=(-2, -1): torch.fft.rfft2(x.float(), dim=axes))(x, axes=(-2, -1))
        W = w_r + 1j * w_i
        X = X * W
        y = (lambda x, s, axes=(-2, -1): torch.fft.irfft2(x, s=s, dim=axes).to(torch.bfloat16))(X, (S, D), axes=(-2, -1))
        return y

    def _B_ref(x, W_gate, W_up, W_down):
        gate = torch.einsum('bsd,df->bsf', x, W_gate)
        up = torch.einsum('bsd,df->bsf', x, W_up)
        gate = gate * (lambda x, dt: x.to(dt))(gate > 0, gate.dtype)
        h = gate * up
        return torch.einsum('bsf,fd->bsd', h, W_down)
    x = A_x
    mod = (_silu(c) @ w_mod).reshape(c.shape[0], 6, 1, -1)
    sa, ca, ga, sb, cb, gb = (mod[:, 0].clone(), mod[:, 1].clone(), mod[:, 2].clone(), mod[:, 3].clone(), mod[:, 4].clone(), mod[:, 5].clone())
    h = _layernorm(x, axis=-1) * (1 + ca) + sa
    x = x + ga * _A_ref(h, A_w_r, A_w_i)
    h = _layernorm(x, axis=-1) * (1 + cb) + sb
    x = x + gb * _B_ref(h, B_W_gate, B_W_up, B_W_down)
    return x
```

```python
class K:
    def __init__(self, name, vgpr=256, sgpr=102, accum=None, wgy=False):
        self.name = name; self.lines = []; self.vgpr = vgpr; self.sgpr = sgpr
        self.accum = accum; self.wgy = wgy
    def __call__(self, s):
        for l in s.strip('\n').split('\n'):
            l = l.strip()
            if l: self.lines.append(l if l.endswith(':') else '    ' + l)
    def srd(self, d, base, nbytes, off=0):
        if off:
            self(f's_add_u32 s{d}, s{base}, {off}\ns_addc_u32 s{d+1}, s{base+1}, 0')
        else:
            self(f's_mov_b32 s{d}, s{base}\ns_mov_b32 s{d+1}, s{base+1}')
        self(f's_mov_b32 s{d+2}, {nbytes}\ns_mov_b32 s{d+3}, 0x20000')
    def text(self):
        return (f'.globl {self.name}\n.p2align 8\n.type {self.name},@function\n{self.name}:\n' +
                '\n'.join(self.lines) + '\n')
    def desc(self):
        accum = self.accum if self.accum is not None else min(256, (self.vgpr + 3) // 4 * 4)
        s = (f'.p2align 6\n.amdhsa_kernel {self.name}\n  .amdhsa_next_free_vgpr {self.vgpr}\n'
             f'  .amdhsa_next_free_sgpr {self.sgpr}\n  .amdhsa_accum_offset {accum}\n'
             '  .amdhsa_group_segment_fixed_size 0\n  .amdhsa_kernarg_size 96\n'
             '  .amdhsa_user_sgpr_count 2\n  .amdhsa_user_sgpr_kernarg_segment_ptr 1\n'
             '  .amdhsa_system_sgpr_workgroup_id_x 1\n')
        if self.wgy: s += '  .amdhsa_system_sgpr_workgroup_id_y 1\n'
        s += '  .amdhsa_float_denorm_mode_32 3\n'
        s += '.end_amdhsa_kernel\n'
        return s

def module(launches, kernels, header='', extra_text=''):
    s = header
    for k, g, b, lds in launches:
        s += f'; @launch kernel={k.name} grid=({g},1,1) block=({b},1,1) lds={lds}\n'
    s += '.amdgcn_target "amdgcn-amd-amdhsa--gfx950"\n.text\n'
    for k in kernels: s += k.text()
    s += extra_text
    s += '.section .rodata,"a"\n'
    for k in kernels: s += k.desc()
    return s
```

```python
import sys
sys.path.insert(0, 'tools')
from asmlib import *
S, D, F, DF = 2048, 576, 4608, 289
MOD = 0
H = 1 << 20
T = H + S*D*4
X = T + S*DF*8
Y = X + S*DF*8
X1 = Y + S*DF*8
H2 = X1 + S*D*4
ACT = H2 + S*D*4
WSB = 268435456

def head(name, nthreads, ptrs):
    k = K(name, vgpr=64, sgpr=96)
    for slot, (d, nb) in ptrs.items():
        k(f's_load_dwordx2 s[{d}:{d+1}], s[0:1], {slot*8}')
    k('s_waitcnt lgkmcnt(0)')
    for slot, (d, nb) in ptrs.items():
        k(f's_mov_b32 s{d+2}, {nb}\ns_mov_b32 s{d+3}, 0x20000')
    k(f'''s_lshl_b32 s3, s2, 8
    v_add_u32 v1, s3, v0
    s_mov_b32 s60, {nthreads}
    v_cmp_gt_u32 vcc, s60, v1
    s_and_saveexec_b64 s[62:63], vcc
    s_cbranch_execz {name}_end''')
    return k
def tail(k):
    k(f's_waitcnt vmcnt(0)\n{k.name}_end:\ns_endpgm')
def divmod_(k, q, r, x, n):
    magic = (1 << 32) // n + 1
    k(f'''s_mov_b32 s61, {magic}
    v_mul_hi_u32 v{q}, v{x}, s61
    s_mov_b32 s61, {n}
    v_mul_lo_u32 v{r}, v{q}, s61
    v_sub_u32 v{r}, v{x}, v{r}''')
WS = (11, (8, WSB))
ks = []
k = head('n0_kernel', 3456, {11: (8, WSB), 7: (12, 1152), 8: (16, 576*3456*2)})
k('''v_lshlrev_b32 v2, 1, v1
v_mov_b32 v10, 0
s_mov_b32 s20, 0
s_mov_b32 s21, 0
s_mov_b32 s22, 0xbfb8aa3b
n0_loop:
v_mov_b32 v3, s20
buffer_load_ushort v4, v3, s[12:15], 0 offen
buffer_load_ushort v5, v2, s[16:19], s21 offen
s_waitcnt vmcnt(0)
v_lshlrev_b32 v4, 16, v4
v_lshlrev_b32 v5, 16, v5
v_mul_f32 v6, s22, v4
v_exp_f32 v6, v6
s_nop 0
v_add_f32 v6, 1.0, v6
v_rcp_f32 v6, v6
s_nop 0
v_mul_f32 v6, v6, v4
v_fmac_f32 v10, v6, v5
s_add_u32 s20, s20, 2
s_add_u32 s21, s21, 6912
s_cmp_lt_u32 s20, 1152
s_cbranch_scc1 n0_loop
v_lshlrev_b32 v2, 2, v1
buffer_store_dword v10, v2, s[8:11], 0 offen''')
tail(k); ks.append((k, 3456))

def ln_kernel(name, src_bf16, src_off, dst_off, shift_i, scale_i):
    k = head(name, S, {11: (8, WSB), 0: (12, S*D*2)})
    esz = 2 if src_bf16 else 4
    def ld(dst):
        if src_bf16:
            k(f'buffer_load_ushort v{dst}, v2, s[12:15], s20 offen\ns_waitcnt vmcnt(0)\nv_lshlrev_b32 v{dst}, 16, v{dst}')
        else:
            k(f'buffer_load_dword v{dst}, v2, s[8:11], s20 offen\ns_waitcnt vmcnt(0)')
    k(f'''s_mov_b32 s61, {D*esz}
    v_mul_lo_u32 v2, v1, s61
    v_add_u32 v2, {src_off}, v2
    v_mov_b32 v10, 0
    s_mov_b32 s20, 0
    {name}_l1:''')
    ld(4)
    k(f'''v_add_f32 v10, v10, v4
    s_add_u32 s20, s20, {esz}
    s_cmp_lt_u32 s20, {D*esz}
    s_cbranch_scc1 {name}_l1
    v_mul_f32 v10, {hex(__import__('struct').unpack('<I', __import__('struct').pack('<f', 1/D))[0])}, v10
    v_mov_b32 v11, 0
    s_mov_b32 s20, 0
    {name}_l2:''')
    ld(4)
    k(f'''v_sub_f32 v4, v4, v10
    v_fmac_f32 v11, v4, v4
    s_add_u32 s20, s20, {esz}
    s_cmp_lt_u32 s20, {D*esz}
    s_cbranch_scc1 {name}_l2
    v_mul_f32 v11, {hex(__import__('struct').unpack('<I', __import__('struct').pack('<f', 1/D))[0])}, v11
    v_add_f32 v11, 0x3727c5ac, v11
    v_rsq_f32 v11, v11
    s_mov_b32 s61, {D*4}
    v_mul_lo_u32 v3, v1, s61
    v_add_u32 v3, {dst_off}, v3
    s_mov_b32 s20, 0
    s_mov_b32 s21, 0
    {name}_l3:''')
    ld(4)
    k(f'''v_mov_b32 v6, {MOD + shift_i*D*4}
    v_mov_b32 v7, {MOD + scale_i*D*4}
    buffer_load_dword v6, v6, s[8:11], s21 offen
    buffer_load_dword v7, v7, s[8:11], s21 offen
    s_waitcnt vmcnt(0)
    v_sub_f32 v4, v4, v10
    v_mul_f32 v4, v4, v11
    v_add_f32 v7, 1.0, v7
    v_fma_f32 v4, v4, v7, v6
    buffer_store_dword v4, v3, s[8:11], s21 offen
    s_add_u32 s20, s20, {esz}
    s_add_u32 s21, s21, 4
    s_cmp_lt_u32 s21, {D*4}
    s_cbranch_scc1 {name}_l3''')
    tail(k); return k
ks.append((ln_kernel('n1_kernel', True, 0, H, 0, 1), S))
import struct
def f2h(x): return hex(struct.unpack('<I', struct.pack('<f', x))[0])
k = head('n2_kernel', S*DF, {11: (8, WSB)})
divmod_(k, 2, 3, 1, DF)
k(f'''s_mov_b32 s61, {D*4}
v_mul_lo_u32 v4, v2, s61
v_add_u32 v4, {H}, v4
v_mov_b32 v10, 0
v_mov_b32 v11, 0
v_mov_b32 v5, 0
s_mov_b32 s20, 0
s_mov_b32 s22, {D}
n2_loop:
buffer_load_dword v6, v4, s[8:11], s20 offen
v_cvt_f32_u32 v7, v5
v_mul_f32 v7, {f2h(1/D)}, v7
v_cos_f32 v8, v7
v_sin_f32 v9, v7
v_add_u32 v5, v5, v3
v_subrev_u32 v12, s22, v5
v_min_u32 v5, v5, v12
s_waitcnt vmcnt(0)
v_fmac_f32 v10, v6, v8
v_fma_f32 v11, -v6, v9, v11
s_add_u32 s20, s20, 4
s_cmp_lt_u32 s20, {D*4}
s_cbranch_scc1 n2_loop
v_lshlrev_b32 v4, 3, v1
v_add_u32 v4, {T}, v4
buffer_store_dwordx2 v[10:11], v4, s[8:11], 0 offen''')
tail(k); ks.append((k, S*DF))
def sdft(name, src, dst, sign, filt):
    k = head(name, S*DF, {11: (8, WSB), 1: (12, S*DF*2), 2: (16, S*DF*2)})
    divmod_(k, 2, 3, 1, DF)
    sg = '-' if sign < 0 else ''
    ng = '' if sign < 0 else '-'
    k(f'''v_lshlrev_b32 v4, 3, v3
    v_add_u32 v4, {src}, v4
    v_mov_b32 v10, 0
    v_mov_b32 v11, 0
    v_mov_b32 v5, 0
    s_mov_b32 s20, 0
    {name}_loop:
    buffer_load_dwordx2 v[6:7], v4, s[8:11], s20 offen
    v_cvt_f32_u32 v12, v5
    v_mul_f32 v12, {f2h(1/S)}, v12
    v_cos_f32 v8, v12
    v_sin_f32 v9, v12
    v_add_u32 v5, v5, v2
    v_and_b32 v5, {S-1}, v5
    s_waitcnt vmcnt(0)
    v_fmac_f32 v10, v6, v8
    v_fma_f32 v10, {ng}v7, v9, v10
    v_fmac_f32 v11, v7, v8
    v_fma_f32 v11, {sg}v6, v9, v11
    s_add_u32 s20, s20, {DF*8}
    s_cmp_lt_u32 s20, {S*DF*8}
    s_cbranch_scc1 {name}_loop''')
    if filt:
        k(f'''v_lshlrev_b32 v4, 1, v1
        buffer_load_ushort v6, v4, s[12:15], 0 offen
        buffer_load_ushort v7, v4, s[16:19], 0 offen
        s_waitcnt vmcnt(0)
        v_lshlrev_b32 v6, 16, v6
        v_lshlrev_b32 v7, 16, v7
        v_mul_f32 v8, v10, v6
        v_fma_f32 v8, -v11, v7, v8
        v_mul_f32 v9, v10, v7
        v_fma_f32 v11, v11, v6, v9
        v_mov_b32 v10, v8''')
    k(f'''v_lshlrev_b32 v4, 3, v1
    v_add_u32 v4, {dst}, v4
    s_nop 1
    buffer_store_dwordx2 v[10:11], v4, s[8:11], 0 offen''')
    tail(k); return k
ks.append((sdft('n3_kernel', T, X, -1, True), S*DF))
ks.append((sdft('n4_kernel', X, Y, +1, False), S*DF))
k = head('n5_kernel', S*D, {11: (8, WSB), 0: (12, S*D*2)})
divmod_(k, 2, 3, 1, D)
k(f'''s_mov_b32 s61, {DF*8}
v_mul_lo_u32 v4, v2, s61
v_add_u32 v4, {Y}, v4
v_mov_b32 v10, 0
v_mov_b32 v5, 0
s_mov_b32 s20, 0
s_mov_b32 s22, {D}
n5_loop:
buffer_load_dwordx2 v[6:7], v4, s[8:11], s20 offen
v_cvt_f32_u32 v12, v5
v_mul_f32 v12, {f2h(1/D)}, v12
v_cos_f32 v8, v12
v_sin_f32 v9, v12
v_add_u32 v5, v5, v3
v_subrev_u32 v12, s22, v5
v_min_u32 v5, v5, v12
s_mov_b32 s23, 2.0
s_cmp_eq_u32 s20, 0
s_cselect_b32 s23, 1.0, s23
s_cselect_b32 s24, 0, 2.0
s_cmp_eq_u32 s20, {288*8}
s_cselect_b32 s23, 1.0, s23
s_cselect_b32 s24, 0, s24
s_waitcnt vmcnt(0)
v_mul_f32 v6, s23, v6
v_mul_f32 v7, s24, v7
v_fmac_f32 v10, v6, v8
v_fma_f32 v10, -v7, v9, v10
s_add_u32 s20, s20, 8
s_cmp_lt_u32 s20, {DF*8}
s_cbranch_scc1 n5_loop
v_lshlrev_b32 v4, 1, v1
buffer_load_ushort v6, v4, s[12:15], 0 offen
v_lshlrev_b32 v4, 2, v3
v_add_u32 v4, {MOD + 2*D*4}, v4
buffer_load_dword v7, v4, s[8:11], 0 offen
s_waitcnt vmcnt(0)
v_lshlrev_b32 v6, 16, v6
v_mul_f32 v10, {f2h(1/(S*D))}, v10
v_fmac_f32 v6, v7, v10
v_lshlrev_b32 v4, 2, v1
v_add_u32 v4, {X1}, v4
buffer_store_dword v6, v4, s[8:11], 0 offen''')
tail(k); ks.append((k, S*D))
ks.append((ln_kernel('n6_kernel', False, X1, H2, 3, 4), S))
k = head('n7_kernel', S*F, {11: (8, WSB), 4: (12, D*F*2), 5: (16, D*F*2)})
k('v_lshrrev_b32 v12, 8, v1')
divmod_(k, 2, 3, 12, 18)
k('v_lshlrev_b32 v3, 8, v3\nv_add_u32 v3, v3, v0')
k(f'''s_mov_b32 s61, {D*4}
v_mul_lo_u32 v4, v2, s61
v_add_u32 v4, {H2}, v4
v_lshlrev_b32 v5, 1, v3
v_mov_b32 v10, 0
v_mov_b32 v11, 0
s_mov_b32 s20, 0
s_mov_b32 s21, 0
n7_loop:
buffer_load_dword v6, v4, s[8:11], s20 offen
buffer_load_ushort v7, v5, s[12:15], s21 offen
buffer_load_ushort v8, v5, s[16:19], s21 offen
s_waitcnt vmcnt(0)
v_lshlrev_b32 v7, 16, v7
v_lshlrev_b32 v8, 16, v8
v_fmac_f32 v10, v6, v7
v_fmac_f32 v11, v6, v8
s_add_u32 s20, s20, 4
s_add_u32 s21, s21, {F*2}
s_cmp_lt_u32 s20, {D*4}
s_cbranch_scc1 n7_loop
v_max_f32 v10, 0, v10
v_mul_f32 v10, v10, v11
v_lshlrev_b32 v4, 2, v1
v_add_u32 v4, {ACT}, v4
buffer_store_dword v10, v4, s[8:11], 0 offen''')
tail(k); ks.append((k, S*F))
k = head('n8_kernel', S*D, {11: (8, WSB), 6: (12, D*F*2), 9: (16, S*D*2)})
divmod_(k, 2, 3, 1, D)
k(f'''s_mov_b32 s61, {F*4}
v_mul_lo_u32 v4, v2, s61
v_add_u32 v4, {ACT}, v4
v_lshlrev_b32 v5, 1, v3
v_mov_b32 v10, 0
s_mov_b32 s20, 0
s_mov_b32 s21, 0
n8_loop:
buffer_load_dword v6, v4, s[8:11], s20 offen
buffer_load_ushort v7, v5, s[12:15], s21 offen
s_waitcnt vmcnt(0)
v_lshlrev_b32 v7, 16, v7
v_fmac_f32 v10, v6, v7
s_add_u32 s20, s20, 4
s_add_u32 s21, s21, {D*2}
s_cmp_lt_u32 s20, {F*4}
s_cbranch_scc1 n8_loop
v_lshlrev_b32 v4, 2, v1
v_add_u32 v4, {X1}, v4
buffer_load_dword v6, v4, s[8:11], 0 offen
v_lshlrev_b32 v4, 2, v3
v_add_u32 v4, {MOD + 5*D*4}, v4
buffer_load_dword v7, v4, s[8:11], 0 offen
s_waitcnt vmcnt(0)
v_fmac_f32 v6, v7, v10
v_cvt_pk_bf16_f32 v6, v6, v6
v_lshlrev_b32 v4, 1, v1
buffer_store_short v6, v4, s[16:19], 0 offen''')
tail(k); ks.append((k, S*D))
nextra = int(sys.argv[1]) if len(sys.argv) > 1 else 0
e = K('empty_kernel', vgpr=8, sgpr=16); e('s_endpgm')
launches = [(k, (n + 255)//256, 256, 0) for k, n in ks] + [(e, 256, 256, 0)] * nextra
open(sys.argv[2] if len(sys.argv) > 2 else 'naive.s', 'w').write(module(launches, [k for k, n in ks] + ([e] if nextra else [])))
```

```python
import re, struct

def f2u(x): return struct.unpack('<I', struct.pack('<f', x))[0]
def fhex(x): return hex(f2u(x))

_REG = re.compile(r'(?<![\w.])(-|\|)?([vas])(?:\[(\d+):(\d+)\]|(\d+))(?![\w])')
TRANS = ('v_exp_f32', 'v_log_f32', 'v_rcp_f32', 'v_rsq_f32', 'v_sqrt_f32', 'v_sin_f32', 'v_cos_f32', 'v_rcp_iflag_f32')

def regs_of(tok):
    out = []
    tok = tok.strip()
    for m in _REG.finditer(tok):
        t = m.group(2)
        if m.group(5) is not None: lo = hi = int(m.group(5))
        else: lo, hi = int(m.group(3)), int(m.group(4))
        out += [(t, i) for i in range(lo, hi + 1)]
    if re.search(r'\bvcc\b', tok): out += [('s', 'vcc')]
    if re.search(r'\bexec\b', tok): out += [('s', 'exec')]
    if re.search(r'\bm0\b', tok): out += [('s', 'm0')]
    return out

def split_ops(s):
    ops, depth, cur = [], 0, ''
    for ch in s:
        if ch in '[(': depth += 1
        if ch in '])': depth -= 1
        if ch == ',' and depth == 0: ops.append(cur.strip()); cur = ''
        else: cur += ch
    if cur.strip(): ops.append(cur.strip())
    return ops

class Ins:
    __slots__ = ('text', 'op', 'ops', 'w', 'r', 'kind', 'auto', 'srcC', 'srcAB', 'passes', 'target', 'lds', 'wide_data', 'mods')
    def __init__(self, text, auto):
        self.text = text; self.auto = auto
        code = text.split(';')[0].strip()
        parts = code.split(None, 1)
        self.op = op = parts[0]
        rest = parts[1] if len(parts) > 1 else ''
        ops = split_ops(rest)
        self.mods = ''
        if ops and not op.startswith('s_waitcnt'):
            last = ops[-1].split(None, 1)
            if len(last) > 1 and not last[0].endswith('('):
                ops[-1] = last[0]; self.mods = last[1]
        self.ops = ops
        R = [regs_of(o) for o in ops]
        flat = lambda L: [x for l in L for x in l]
        w, r = [], []
        self.srcC = []; self.srcAB = []; self.passes = 0; self.target = None; self.lds = False; self.wide_data = []
        base = re.sub(r'_(e32|e64|dpp|sdwa)$', '', op)
        if op.startswith('v_mfma'):
            kind = 'mfma'; w = R[0]; self.srcAB = R[1] + R[2]; self.srcC = R[3]; r = self.srcAB + self.srcC
            self.passes = 8 if '32x32x16' in op or '32x32x8' in op else 4
            assert ('16x16x32' in op or '32x32x16' in op or '16x16x16' in op), op
        elif op.startswith('v_'):
            kind = 'valu'
            if base.startswith('v_cmpx'): raise ValueError('v_cmpx not supported')
            if base in ('v_nop',): pass
            elif base.startswith('v_permlane') and 'swap' in base or base == 'v_swap_b32':
                w = R[0] + R[1]; r = R[0] + R[1]
            elif '_co_' in base or base in ('v_div_scale_f32', 'v_mad_u64_u32'):
                w = R[0] + R[1]; r = flat(R[2:])
            else:
                w = R[0]; r = flat(R[1:])
                if base in ('v_fmac_f32', 'v_pk_fmac_f16', 'v_dot2c_f32_bf16', 'v_writelane_b32') or op.endswith('_dpp'): r = r + R[0]
                if base == 'v_cndmask_b32' and len(ops) == 3: r = r + [('s', 'vcc')]
        elif op.startswith('ds_'):
            kind = 'ds'
            if op.startswith('ds_read') or 'permute' in op or op.startswith('ds_swizzle'):
                w = R[0]; r = flat(R[1:])
                if '_d16' in op: r = r + R[0]
            else: r = flat(R)
        elif op.startswith('buffer_') or op.startswith('global_'):
            kind = 'vmem'
            self.lds = (' lds' in ' ' + self.mods) or '_lds_' in op
            if op in ('buffer_wbl2', 'buffer_inv'): pass
            elif self.lds: r = flat(R) + [('s', 'm0')]
            elif '_load_' in op:
                w = R[0]; r = flat(R[1:])
                if '_d16' in op: r = r + R[0]
            elif '_store_' in op:
                r = flat(R)
                if op.endswith('x3') or op.endswith('x4'): self.wide_data = R[0] if op.startswith('buffer_') else R[1]
            elif '_atomic_' in op:
                r = flat(R)
                if 'sc0' in self.mods: w = R[0]; r = (flat(R) if op.startswith('buffer_') else flat(R[1:]))
            else: raise ValueError(op)
        elif op.startswith('s_load') or op.startswith('s_buffer_load') or op in ('s_memtime', 's_memrealtime'):
            kind = 'smem'; w = R[0]; r = flat(R[1:])
        elif op.startswith('s_'):
            kind = 'salu'
            if op in ('s_branch',) or op.startswith('s_cbranch'):
                kind = 'branch'; self.target = ops[0]
                if 'vcc' in op: r = [('s', 'vcc')]
                if 'exec' in op: r = [('s', 'exec')]
            elif op.startswith('s_cmp') or op.startswith('s_bitcmp'): r = flat(R)
            elif op in ('s_waitcnt', 's_nop', 's_barrier', 's_endpgm', 's_setprio', 's_sleep'): pass
            elif 'saveexec' in op: w = R[0] + [('s', 'exec')]; r = flat(R[1:]) + [('s', 'exec')]
            else:
                w = R[0] if R else []; r = flat(R[1:])
                if op in ('s_addk_i32', 's_mulk_i32', 's_cmov_b32', 's_cmov_b64'): r = r + w
        else:
            raise ValueError('unknown instruction: ' + text)
        self.kind = kind; self.w = set(w); self.r = set(r)
    def states(self):
        if self.op == 's_nop': return int(self.ops[0], 0) + 1
        return 1

class Label:
    def __init__(self, name): self.name = name

def need_states(p, c):
    n = 0
    vw = {x for x in p.w if x[0] in 'va'}; sw = {x for x in p.w if x[0] == 's'}
    cbase = re.sub(r'_(e32|e64|dpp|sdwa)$', '', c.op)
    if p.kind == 'valu':
        pbase = re.sub(r'_(e32|e64|dpp|sdwa)$', '', p.op)
        if vw:
            if c.kind == 'mfma' and vw & c.r: n = max(n, 2)
            if c.kind == 'valu':
                if c.op.endswith('_dpp') and vw & c.r: n = max(n, 2)
                if cbase.startswith('v_permlane') and vw & c.r: n = max(n, 2)
                if cbase in ('v_readfirstlane_b32', 'v_readlane_b32') and vw & c.r: n = max(n, 1)
                if pbase in TRANS and vw & c.r: n = max(n, 1)
                if (p.op.endswith('_sdwa') or (pbase.startswith('v_cvt') and 'op_sel' in p.mods)) and vw & (c.r | c.w): n = max(n, 1)
            if pbase in TRANS and c.kind in ('ds', 'vmem') and vw & c.r: n = max(n, 1)
        if sw:
            if c.kind == 'valu' and sw & c.r:
                n = max(n, 4 if cbase in ('v_readlane_b32', 'v_writelane_b32', 'v_div_fmas_f32') else 2)
            if c.kind == 'vmem' and sw & c.r: n = max(n, 5)
            if c.kind in ('salu', 'smem', 'branch') and sw & c.r: n = max(n, 2)
            if c.kind == 'mfma' and ('s', 'exec') in sw: n = max(n, 4)
    if p.kind == 'salu' and ('s', 'm0') in p.w and c.kind == 'vmem' and c.lds: n = max(n, 1)
    if p.kind == 'vmem' and p.wide_data and set(p.wide_data) & c.w:
        n = max(n, 2 if c.kind in ('valu', 'mfma') else 1)
    if p.kind == 'mfma':
        big = p.passes == 8
        if c.kind == 'mfma':
            if p.w & set(c.srcAB): n = max(n, 12 if big else 8)
            if p.w & set(c.srcC):
                same = (p.w == set(c.srcC) and p.passes == c.passes)
                if not same: n = max(n, 10 if big else 6)
            elif p.w & c.w: n = max(n, 10 if big else 6)
        elif c.kind in ('valu', 'vmem', 'ds'):
            if p.w & (c.r | c.w): n = max(n, 12 if big else 8)
            if c.kind == 'valu' and set(p.srcC) & c.w: n = max(n, 7 if big else 3)
    return n

class Kern:
    def __init__(self, name, lds=0, block=256, grid=256):
        self.name = name; self.items = []; self.auto = True
        self.lds = lds; self.block = block; self.grid = grid
        self.nv = 0; self.na = 0; self.ns = 16; self.vfree = []
        self.force_vgpr = None
    def v(self, n=1, align=None):
        align = align or (1 if n == 1 else 2)
        b = (self.nv + align - 1) // align * align
        self.nv = b + n; assert self.nv <= 256, 'out of VGPRs'
        return b
    def a(self, n=1, align=None):
        align = align or (1 if n == 1 else 2)
        b = (self.na + align - 1) // align * align
        self.na = b + n; assert self.na <= 256, 'out of AGPRs'
        return b
    def s(self, n=1, align=None):
        align = align or (1 if n == 1 else (2 if n == 2 else 4))
        b = (self.ns + align - 1) // align * align
        self.ns = b + n; assert self.ns <= 100, 'out of SGPRs'
        return b
    def __call__(self, s):
        for l in s.split('\n'):
            l = l.strip()
            if not l or l.startswith(';'): continue
            if l.endswith(':'): self.items.append(Label(l[:-1]))
            else: self.items.append(Ins(l, self.auto))
    def L(self, n): return f'{self.name}_{n}'
    def srd(self, ptr, nbytes, off=0, d=None):
        d = self.s(4) if d is None else d
        if off > 0: self(f's_add_u32 s{d}, s{ptr}, {off}\ns_addc_u32 s{d+1}, s{ptr+1}, 0')
        elif off < 0: self(f's_sub_u32 s{d}, s{ptr}, {-off}\ns_subb_u32 s{d+1}, s{ptr+1}, 0')
        else: self(f's_mov_b32 s{d}, s{ptr}\ns_mov_b32 s{d+1}, s{ptr+1}')
        self(f's_mov_b32 s{d+2}, {nbytes}\ns_mov_b32 s{d+3}, 0x20000')
        return d
    def _autowait(self):
        out = []; vm = []; lg = []; saved = {}; live = True
        def emit(vn, ln):
            t = 's_waitcnt' + (f' vmcnt({vn})' if vn is not None else '') + (f' lgkmcnt({ln})' if ln is not None else '')
            out.append(Ins(t, True))
        for it in self.items:
            if isinstance(it, Label):
                if it.name in saved:
                    svm, slg = saved[it.name]
                    if not live: vm, lg = list(svm), list(slg)
                    else:
                        if [x for x in svm if x] != [x for x in vm if x] or len(svm) != len(vm): vm = [set().union(*vm, *svm)] if (vm or svm) else []
                        if slg != lg: lg = [('smem', set().union(*[x[1] for x in lg + slg]))] if (lg or slg) else []
                live = True; out.append(it); continue
            touched = it.r | it.w
            if it.op == 's_waitcnt':
                m = re.search(r'vmcnt\((\d+)\)', it.text)
                if m: n = int(m.group(1)); vm = vm[len(vm) - n:] if n < len(vm) else vm
                if m and int(m.group(1)) == 0: vm = []
                m = re.search(r'lgkmcnt\((\d+)\)', it.text)
                if m:
                    n = int(m.group(1))
                    if n == 0: lg = []
                    elif not any(x[0] == 'smem' for x in lg) and n < len(lg): lg = lg[len(lg) - n:]
                out.append(it); continue
            vn = ln = None
            idx = max([i for i, x in enumerate(vm) if x & touched], default=None)
            if idx is not None: vn = min(63, len(vm) - 1 - idx)
            idx2 = max([i for i, x in enumerate(lg) if x[1] & touched], default=None)
            if idx2 is not None:
                ln = 0 if any(x[0] == 'smem' for x in lg) else min(15, len(lg) - 1 - idx2)
            if vn is not None or ln is not None:
                if not it.auto:
                    raise ValueError(f'{self.name}: missing wait (vm {vn}, lgkm {ln}) before: {it.text}')
                emit(vn, ln)
                if vn is not None: vm = vm[idx + 1:]
                if ln is not None: lg = [] if ln == 0 else lg[idx2 + 1:]
            if it.kind == 'vmem' and it.op not in ('buffer_wbl2', 'buffer_inv'): vm.append(set(it.w))
            if it.kind == 'ds': lg.append(('ds', set(it.w)))
            if it.kind == 'smem': lg.append(('smem', set(it.w)))
            if it.kind == 'branch':
                saved.setdefault(it.target, (list(vm), list(lg)))
                if it.op == 's_branch': live = False
            if it.op == 's_endpgm': live = False; vm = []; lg = []
            out.append(it)
        self.items = out
    def _hazards(self):
        changed = True
        while changed:
            changed = False
            items = self.items
            lab = {it.name: i for i, it in enumerate(items) if isinstance(it, Label)}
            preds = {}
            for i, it in enumerate(items):
                if isinstance(it, Ins) and it.kind == 'branch' and it.target in lab: preds.setdefault(lab[it.target], []).append(i)
            ins_at = {}
            for i, c in enumerate(items):
                if not isinstance(c, Ins) or c.op in ('s_nop', 's_waitcnt', 's_barrier', 's_endpgm'): continue
                need = 0
                stack = [(i - 1, 0)]; seen = {}
                while stack:
                    j, d = stack.pop()
                    while j >= 0 and d < 20:
                        if seen.get(j, 99) <= d: break
                        seen[j] = d
                        p = items[j]
                        if isinstance(p, Label):
                            for b in preds.get(j, []): stack.append((b, d))
                            j -= 1
                            if j >= 0 and isinstance(items[j], Ins) and items[j].op in ('s_branch', 's_endpgm'): break
                            continue
                        need = max(need, need_states(p, c) - d)
                        d += p.states(); j -= 1
                if need > 0: ins_at[i] = need
            if ins_at:
                out = []; last = -100
                for i, it in enumerate(items):
                    if i in ins_at and i - last > 20:
                        out.append(Ins(f's_nop {ins_at[i]-1}', True)); last = i
                    out.append(it)
                self.items = out; changed = True
    def finalize(self):
        self._autowait(); self._hazards()
        body = []
        for it in self.items:
            body.append(f'{it.name}:' if isinstance(it, Label) else '    ' + it.text)
        mv = ma = ms = -1
        for it in self.items:
            if isinstance(it, Ins):
                for t, n in it.r | it.w:
                    if t == 'v': mv = max(mv, n)
                    elif t == 'a': ma = max(ma, n)
                    elif isinstance(n, int): ms = max(ms, n)
        self.accum = max(4, (mv + 4) // 4 * 4)
        self.vgpr = self.accum + ma + 1 if ma >= 0 else mv + 1
        if self.force_vgpr: self.vgpr = max(self.vgpr, self.force_vgpr)
        self.sgpr = ms + 1
        self.body = '\n'.join(body)
        return self
    def text(self):
        return f'.globl {self.name}\n.p2align 8\n.type {self.name},@function\n{self.name}:\n{self.body}\n'
    def desc(self):
        return (f'.p2align 6\n.amdhsa_kernel {self.name}\n  .amdhsa_next_free_vgpr {self.vgpr}\n'
                f'  .amdhsa_next_free_sgpr {self.sgpr}\n  .amdhsa_accum_offset {self.accum}\n'
                '  .amdhsa_group_segment_fixed_size 0\n  .amdhsa_kernarg_size 96\n'
                '  .amdhsa_user_sgpr_count 2\n  .amdhsa_user_sgpr_kernarg_segment_ptr 1\n'
                '  .amdhsa_system_sgpr_workgroup_id_x 1\n  .amdhsa_float_denorm_mode_32 3\n.end_amdhsa_kernel\n')

def module(launch_list, header='', data=''):
    ks = []
    for k in launch_list:
        if k not in ks: ks.append(k)
    s = header
    for k in launch_list:
        s += f'; @launch kernel={k.name} grid=({k.grid},1,1) block=({k.block},1,1) lds={k.lds}\n'
    s += '.amdgcn_target "amdgcn-amd-amdhsa--gfx950"\n.text\n'
    for k in ks: s += k.text()
    s += data
    s += '.section .rodata,"a"\n'
    for k in ks: s += k.desc()
    return s

def V(b, n=1): return f'v{b}' if n == 1 else f'v[{b}:{b+n-1}]'
def A(b, n=1): return f'a{b}' if n == 1 else f'a[{b}:{b+n-1}]'
def S(b, n=1): return f's{b}' if n == 1 else f's[{b}:{b+n-1}]'
```

```python
from asmgen import *
import layout as LY
ARG = dict(x=0, wr=8, wi=16, wg=32, wu=40, wd=48, c=56, wmod=64, out=72, dbg=80, ws=88)
STAMPS = False

def begin(k, idx, ptrs):
    k.idx = idx
    if STAMPS:
        k.st0 = k.s(2); k(f's_memrealtime {S(k.st0,2)}')
        if 'ws' not in ptrs: ptrs = ptrs + ['ws']
    k(f's_cmp_ge_u32 s2, {k.grid}\ns_cbranch_scc1 {k.L("end")}')
    P = {}
    for p in ptrs:
        P[p] = k.s(2); k(f's_load_dwordx2 {S(P[p],2)}, s[0:1], {ARG[p]}')
    k.P = P
    return P

def stamp_mid(k):
    if STAMPS:
        if not hasattr(k, 'st1'): k.st1 = k.s(2)
        k(f's_memrealtime {S(k.st1,2)}')

def finish(k, last=True):
    if STAMPS:
        if not hasattr(k, 'st2'):
            k.st2 = k.s(2); k.st_srd = k.s(4); k.st_tmp = k.s(1)
        if not hasattr(k, 'st1'): k.st1 = k.st0
        au = k.auto; k.auto = True
        k(f's_waitcnt vmcnt(0) lgkmcnt(0)\ns_memrealtime {S(k.st2,2)}\ns_mov_b64 exec, -1')
        k.srd(k.P['ws'], 0x8000, LY.STAMP, d=k.st_srd)
        k(f'''s_lshl_b32 s{k.st_tmp}, s2, 4
        s_add_u32 s{k.st_tmp}, s{k.st_tmp}, {k.idx * 5120}
        v_mov_b32 v4, s{k.st0}
        v_mov_b32 v5, s{k.st1}
        v_mov_b32 v6, s{k.st2}
        v_mov_b32 v7, 0
        v_mov_b32 v8, s{k.st_tmp}
        buffer_store_dwordx4 v[4:7], v8, {S(k.st_srd,4)}, 0 offen''')
        k.auto = au
    if last: k(f'{k.L("end")}:')
    k('s_endpgm')

_pc = [0]
def code_addr(k, expr, back=False):
    a = k.s(2); _pc[0] += 1; lab = k.L(f'pc{_pc[0]}')
    if back: k(f's_getpc_b64 {S(a,2)}\n{lab}:\ns_sub_u32 s{a}, s{a}, {lab}-{expr}\ns_subb_u32 s{a+1}, s{a+1}, 0')
    else: k(f's_getpc_b64 {S(a,2)}\n{lab}:\ns_add_u32 s{a}, s{a}, {expr}-{lab}\ns_addc_u32 s{a+1}, s{a+1}, 0')
    return a

class Tabs:
    def __init__(self, k, lane16, first, soff=None):
        self.k = k; self.lane16 = lane16; self.first = first; self.bases = {}
        self.sa = code_addr(k, f'tabs+{(first + 4) * 1024}')
        if soff is not None: k(f's_add_u32 s{self.sa}, s{self.sa}, s{soff}\ns_addc_u32 s{self.sa+1}, s{self.sa+1}, 0')
        self.cur = 0
    def load(self, dst, fr):
        k = self.k; rel = fr - self.first; grp = rel // 8
        if grp not in self.bases:
            while self.cur < grp:
                k(f's_add_u32 s{self.sa}, s{self.sa}, 8192\ns_addc_u32 s{self.sa+1}, s{self.sa+1}, 0'); self.cur += 1
            assert self.cur == grp
            b = k.v(2); self.bases[grp] = b
            k(f'v_lshl_add_u64 {V(b,2)}, {V(self.lane16,2)}, 0, {S(self.sa,2)}')
        k(f'global_load_dwordx4 {dst}, {V(self.bases[grp],2)}, off offset:{(rel % 8) * 1024 - 4096}')

def wave_id(k, dst_s, tmp_v):
    k(f'v_lshrrev_b32 v{tmp_v}, 6, v0\nv_readfirstlane_b32 s{dst_s}, v{tmp_v}')

def red16(k, regs, tmp=None):
    for pat in ('quad_perm:[1,0,3,2]', 'quad_perm:[2,3,0,1]', 'row_half_mirror', 'row_mirror'):
        for r in regs: k(f'v_add_f32_dpp v{r}, v{r}, v{r} {pat} row_mask:0xf bank_mask:0xf')
def red_swap(k, regs, tmps, which):
    for r, t in zip(regs, tmps): k(f'v_mov_b32 v{t}, v{r}')
    for r, t in zip(regs, tmps): k(f'v_permlane{which}_swap_b32 v{r}, v{t}')
    for r, t in zip(regs, tmps): k(f'v_add_f32 v{r}, v{r}, v{t}')
```

```python
import numpy as np
S, D, F, DF = 2048, 576, 4608, 289
M1   = 0x0
GA   = 0x1400
SB   = GA + 2304
CB1  = SB + 2304
GB   = CB1 + 2304
M1P  = 0x50000
MRP  = 0x58000
STAMP = 0x8000
WT   = 0x100000
WT_BYTES = DF * 8192
T    = 0x400000
T_BYTES = DF * 8192
TPP  = 9344
TP   = 0x700000
TP_BYTES = 256 * TPP + 4096
X1   = 0xA00000
H2   = 0xD00000
PART = 0x1000000
XACT = 0x2400000
FLAG = 0x40000
XB = S * D * 2
FSCALE = 2.0 / (S * D)

def bf16(x):
    u = np.ascontiguousarray(x, dtype=np.float32).view(np.uint32)
    return ((u + 0x7FFF + ((u >> 16) & 1)) >> 16).astype(np.uint32)
def frag(fn):
    v = np.array([[fn(l, j) for j in range(8)] for l in range(64)], dtype=np.float64)
    b = bf16(v.astype(np.float32))
    return (b[:, 0::2] | (b[:, 1::2] << 16)).reshape(-1)
def f32tab(fn):
    v = np.array([[fn(l, j) for j in range(4)] for l in range(64)], dtype=np.float32)
    return v.view(np.uint32).reshape(-1)
def cs(num, den):
    num %= den
    a = 2 * np.pi * num / den
    c, s = np.cos(a), np.sin(a)
    if (4 * num) % den == 0:
        c, s = float(round(c)), float(round(s))
    return c, s

tabs = []; tab_index = {}
def add(name, frags):
    tab_index[name] = len(tabs); tabs.extend(frags)

def k1B(im):
    def fn(l, j):
        b, slot = 8 * (l >> 4) + j, l & 15
        if b >= 18 or slot >= 10: return 0.0
        c, s = cs(b * slot, 18)
        return -s if im else c
    return frag(fn)
add('k1B', [k1B(0), k1B(1)])
add('k1tw', [f32tab(lambda l, jj, h=h, w=w: cs((16 * h + 4 * (l >> 4) + jj) * (l & 15), 576)[w]) for h in range(2) for w in range(2)])
def k1A(Tt, ks):
    def fn(l, j):
        g, mi = l >> 4, l & 15
        k2, ri = 8 * Tt + 2 * (mi >> 2) + ((mi & 3) >> 1), mi & 1
        a = 16 * (j >> 2) + 4 * g + (j & 3)
        c, s = cs(a * k2, 32); sg = -1.0 if k2 >= 16 else 1.0
        if ks == 0: return c if ri == 0 else -s * sg
        return s if ri == 0 else c * sg
    return frag(fn)
add('k1A', [k1A(Tt, ks) for Tt in range(4) for ks in range(2)])
def k2tab(kind):
    out = []
    for w in range(2):
        for t in range(2):
            def fn(l, j):
                hh, col = l >> 5, l & 31
                idx = 16 * t + 8 * (j >> 2) + 4 * hh + (j & 3)
                if kind == 'F': c, s = cs(idx * col, 32)
                elif kind == 'G': c, s = cs(idx * (2 * col + 1), 64)
                else: c, s = cs(col * (2 * idx + 1), 64)
                return (c, s, -s)[w]
            out.append(frag(fn))
    return out
add('k2F', k2tab('F')); add('k2G', k2tab('G')); add('k2H', k2tab('H'))
add('k3B', [frag(lambda l, j, h=h, w=w: cs((16 * h + (l & 15)) * (16 * (j >> 2) + 4 * (l >> 4) + (j & 3)), 32)[w]) for w in range(2) for h in range(2)])
add('k3tw', [f32tab(lambda l, e, Tt=Tt: cs((16 * (e >> 1) + (l & 15)) * (4 * Tt + (l >> 4)), 576)[e & 1]) for Tt in range(3)])
def k3E(sel):
    def fn(l, j):
        g, col = l >> 4, l & 15
        slot, ri = 4 * (j >> 1) + g, j & 1
        if j >= 6 or slot >= 10: return 0.0
        if sel is None: b = col
        else:
            sr, h = sel
            if col >= 8 or (col >> 2) != sr or ((col >> 1) & 1) != h: return 0.0
            b = 16 + (col & 1)
        c, s = cs(b * slot, 18)
        return -s if ri else c
    return frag(fn)
add('k3E', [k3E(None)] + [k3E((sr, h)) for sr in range(2) for h in range(2)])

def tabs_asm():
    s = '.p2align 8\n.type tabs,@object\ntabs:\n'
    for t in tabs:
        for i in range(0, 256, 8):
            s += '.long ' + ','.join(hex(int(x)) for x in t[i:i + 8]) + '\n'
    s += f'.size tabs, {len(tabs) * 1024}\ntabs_end:\n'
    return s
```

```python
import sys, importlib
sys.path.insert(0, 'gen')
import common, layout
from asmgen import module
def make(out, names, stamps=False):
    common.STAMPS = stamps
    ks = [importlib.import_module(n).build() for n in names]
    hdr = open('adaLN_cond__spectral_gfnet__glu_gated_reglu__prompt.s.ref').read().split('; Override launch')[0]
    open(out, 'w').write(module(ks, header=hdr, data=layout.tabs_asm()))
    for k in ks: print(k.name, 'vgpr', k.vgpr, 'accum', k.accum, 'sgpr', k.sgpr, 'lds', k.lds, 'ins', len(k.items))
if __name__ == '__main__':
    out = sys.argv[1]; names = sys.argv[2].split(',')
    make(out, names, stamps='stamp' in sys.argv[3:])
```

```python
import re, struct, subprocess, os, tempfile

def f2u(x): return struct.unpack('<I', struct.pack('<f', x))[0]
def fhex(x): return hex(f2u(x))

_REG = re.compile(r'(?<![\w.])(-|\|)?([vas])(?:\[(\d+):(\d+)\]|(\d+))(?![\w])')
TRANS = ('v_exp_f32', 'v_log_f32', 'v_rcp_f32', 'v_rsq_f32', 'v_sqrt_f32', 'v_sin_f32', 'v_cos_f32', 'v_rcp_iflag_f32')

def regs_of(tok):
    out = []
    tok = tok.strip()
    for m in _REG.finditer(tok):
        t = m.group(2)
        if m.group(5) is not None: lo = hi = int(m.group(5))
        else: lo, hi = int(m.group(3)), int(m.group(4))
        out += [(t, i) for i in range(lo, hi + 1)]
    if re.search(r'\bvcc\b', tok): out += [('s', 'vcc')]
    if re.search(r'\bexec\b', tok): out += [('s', 'exec')]
    if re.search(r'\bm0\b', tok): out += [('s', 'm0')]
    return out

def split_ops(s):
    ops, depth, cur = [], 0, ''
    for ch in s:
        if ch in '[(': depth += 1
        if ch in '])': depth -= 1
        if ch == ',' and depth == 0: ops.append(cur.strip()); cur = ''
        else: cur += ch
    if cur.strip(): ops.append(cur.strip())
    return ops

class Ins:
    __slots__ = ('text', 'op', 'ops', 'w', 'r', 'kind', 'auto', 'srcC', 'srcAB', 'passes', 'target', 'lds', 'wide_data', 'mods')
    def __init__(self, text, auto):
        self.text = text; self.auto = auto
        code = text.split(';')[0].strip()
        parts = code.split(None, 1)
        self.op = op = parts[0]
        rest = parts[1] if len(parts) > 1 else ''
        ops = split_ops(rest)
        self.mods = ''
        if ops and not op.startswith('s_waitcnt'):
            last = ops[-1].split(None, 1)
            if len(last) > 1 and not last[0].endswith('('):
                ops[-1] = last[0]; self.mods = last[1]
        self.ops = ops
        R = [regs_of(o) for o in ops]
        flat = lambda L: [x for l in L for x in l]
        w, r = [], []
        self.srcC = []; self.srcAB = []; self.passes = 0; self.target = None; self.lds = False; self.wide_data = []
        base = re.sub(r'_(e32|e64|dpp|sdwa)$', '', op)
        if op.startswith('v_mfma'):
            kind = 'mfma'; w = R[0]; self.srcAB = R[1] + R[2]; self.srcC = R[3]; r = self.srcAB + self.srcC
            self.passes = 8 if '32x32x16' in op or '32x32x8' in op else 4
            assert ('16x16x32' in op or '32x32x16' in op or '16x16x16' in op), op
        elif op.startswith('v_'):
            kind = 'valu'
            if base.startswith('v_cmpx'): raise ValueError('v_cmpx not supported')
            if base in ('v_nop',): pass
            elif base.startswith('v_permlane') and 'swap' in base or base == 'v_swap_b32':
                w = R[0] + R[1]; r = R[0] + R[1]
            elif '_co_' in base or base in ('v_div_scale_f32', 'v_mad_u64_u32'):
                w = R[0] + R[1]; r = flat(R[2:])
            else:
                w = R[0]; r = flat(R[1:])
                if base in ('v_fmac_f32', 'v_pk_fmac_f16', 'v_dot2c_f32_bf16', 'v_writelane_b32') or op.endswith('_dpp'): r = r + R[0]
                if base == 'v_cndmask_b32' and len(ops) == 3: r = r + [('s', 'vcc')]
        elif op.startswith('ds_'):
            kind = 'ds'
            if op.startswith('ds_read') or 'permute' in op or op.startswith('ds_swizzle'):
                w = R[0]; r = flat(R[1:])
                if '_d16' in op: r = r + R[0]
            else: r = flat(R)
        elif op.startswith('buffer_') or op.startswith('global_'):
            kind = 'vmem'
            self.lds = (' lds' in ' ' + self.mods) or '_lds_' in op
            if op in ('buffer_wbl2', 'buffer_inv'): pass
            elif self.lds: r = flat(R) + [('s', 'm0')]
            elif '_load_' in op:
                w = R[0]; r = flat(R[1:])
                if '_d16' in op: r = r + R[0]
            elif '_store_' in op:
                r = flat(R)
                if op.endswith('x3') or op.endswith('x4'): self.wide_data = R[0] if op.startswith('buffer_') else R[1]
            elif '_atomic_' in op:
                r = flat(R)
                if 'sc0' in self.mods: w = R[0]; r = (flat(R) if op.startswith('buffer_') else flat(R[1:]))
            else: raise ValueError(op)
        elif op.startswith('s_load') or op.startswith('s_buffer_load') or op in ('s_memtime', 's_memrealtime'):
            kind = 'smem'; w = R[0]; r = flat(R[1:])
        elif op.startswith('s_'):
            kind = 'salu'
            if op in ('s_branch',) or op.startswith('s_cbranch'):
                kind = 'branch'; self.target = ops[0]
                if 'vcc' in op: r = [('s', 'vcc')]
                if 'exec' in op: r = [('s', 'exec')]
            elif op.startswith('s_cmp') or op.startswith('s_bitcmp'): r = flat(R)
            elif op in ('s_waitcnt', 's_nop', 's_barrier', 's_endpgm', 's_setprio', 's_sleep'): pass
            elif 'saveexec' in op: w = R[0] + [('s', 'exec')]; r = flat(R[1:]) + [('s', 'exec')]
            else:
                w = R[0] if R else []; r = flat(R[1:])
                if op in ('s_addk_i32', 's_mulk_i32', 's_cmov_b32', 's_cmov_b64'): r = r + w
        else:
            raise ValueError('unknown instruction: ' + text)
        self.kind = kind; self.w = set(w); self.r = set(r)
    def states(self):
        if self.op == 's_nop': return int(self.ops[0], 0) + 1
        return 1

class Label:
    def __init__(self, name): self.name = name

def need_states(p, c):
    n = 0
    vw = {x for x in p.w if x[0] in 'va'}; sw = {x for x in p.w if x[0] == 's'}
    cbase = re.sub(r'_(e32|e64|dpp|sdwa)$', '', c.op)
    if p.kind == 'valu':
        pbase = re.sub(r'_(e32|e64|dpp|sdwa)$', '', p.op)
        if vw:
            if c.kind == 'mfma' and vw & c.r: n = max(n, 2)
            if c.kind == 'valu':
                if c.op.endswith('_dpp') and vw & c.r: n = max(n, 2)
                if cbase.startswith('v_permlane') and vw & c.r: n = max(n, 2)
                if cbase in ('v_readfirstlane_b32', 'v_readlane_b32') and vw & c.r: n = max(n, 1)
                if pbase in TRANS and vw & c.r: n = max(n, 1)
                if (p.op.endswith('_sdwa') or (pbase.startswith('v_cvt') and 'op_sel' in p.mods)) and vw & (c.r | c.w): n = max(n, 1)
            if pbase in TRANS and c.kind in ('ds', 'vmem') and vw & c.r: n = max(n, 1)
        if sw:
            if c.kind == 'valu' and sw & c.r:
                n = max(n, 4 if cbase in ('v_readlane_b32', 'v_writelane_b32', 'v_div_fmas_f32') else 2)
            if c.kind == 'vmem' and sw & c.r: n = max(n, 5)
            if c.kind in ('salu', 'smem', 'branch') and sw & c.r: n = max(n, 2)
            if c.kind == 'mfma' and ('s', 'exec') in sw: n = max(n, 4)
    if p.kind == 'salu' and ('s', 'm0') in p.w and c.kind == 'vmem' and c.lds: n = max(n, 1)
    if p.kind == 'vmem' and p.wide_data and set(p.wide_data) & c.w:
        n = max(n, 2 if c.kind in ('valu', 'mfma') else 1)
    if p.kind == 'mfma':
        big = p.passes == 8
        if c.kind == 'mfma':
            if p.w & set(c.srcAB): n = max(n, 12 if big else 8)
            if p.w & set(c.srcC):
                same = (p.w == set(c.srcC) and p.passes == c.passes)
                if not same: n = max(n, 10 if big else 6)
            elif p.w & c.w: n = max(n, 10 if big else 6)
        elif c.kind in ('valu', 'vmem', 'ds'):
            if p.w & (c.r | c.w): n = max(n, 12 if big else 8)
            if c.kind == 'valu' and set(p.srcC) & c.w: n = max(n, 7 if big else 3)
    return n

class Kern:
    def __init__(self, name, lds=0, block=256, grid=256):
        self.name = name; self.items = []; self.auto = True
        self.lds = lds; self.block = block; self.grid = grid
        self.nv = 0; self.na = 0; self.ns = 4; self.vfree = []
        self.force_vgpr = None
    def v(self, n=1, align=None):
        align = align or (1 if n == 1 else 2)
        b = (self.nv + align - 1) // align * align
        self.nv = b + n; assert self.nv <= 256, 'out of VGPRs'
        return b
    def a(self, n=1, align=None):
        align = align or (1 if n == 1 else 2)
        b = (self.na + align - 1) // align * align
        self.na = b + n; assert self.na <= 256, 'out of AGPRs'
        return b
    def s(self, n=1, align=None):
        align = align or (1 if n == 1 else (2 if n == 2 else 4))
        b = (self.ns + align - 1) // align * align
        self.ns = b + n; assert self.ns <= 100, 'out of SGPRs'
        return b
    def __call__(self, s):
        for l in s.split('\n'):
            l = l.strip()
            if not l or l.startswith(';'): continue
            if l.endswith(':'): self.items.append(Label(l[:-1]))
            else: self.items.append(Ins(l, self.auto))
    def L(self, n): return f'{self.name}_{n}'
    def srd(self, ptr, nbytes, off=0, d=None):
        d = self.s(4) if d is None else d
        if off > 0: self(f's_add_u32 s{d}, s{ptr}, {off}\ns_addc_u32 s{d+1}, s{ptr+1}, 0')
        elif off < 0: self(f's_sub_u32 s{d}, s{ptr}, {-off}\ns_subb_u32 s{d+1}, s{ptr+1}, 0')
        else: self(f's_mov_b32 s{d}, s{ptr}\ns_mov_b32 s{d+1}, s{ptr+1}')
        self(f's_mov_b32 s{d+2}, {nbytes}\ns_mov_b32 s{d+3}, 0x20000')
        return d
    def _autowait(self):
        out = []; vm = []; lg = []; saved = {}; live = True
        def emit(vn, ln):
            t = 's_waitcnt' + (f' vmcnt({vn})' if vn is not None else '') + (f' lgkmcnt({ln})' if ln is not None else '')
            out.append(Ins(t, True))
        for it in self.items:
            if isinstance(it, Label):
                if it.name in saved:
                    svm, slg = saved[it.name]
                    if not live: vm, lg = list(svm), list(slg)
                    else:
                        if [x for x in svm if x] != [x for x in vm if x] or len(svm) != len(vm): vm = [set().union(*vm, *svm)] if (vm or svm) else []
                        if slg != lg: lg = [('smem', set().union(*[x[1] for x in lg + slg]))] if (lg or slg) else []
                live = True; out.append(it); continue
            touched = it.r | it.w
            if it.op == 's_waitcnt':
                m = re.search(r'vmcnt\((\d+)\)', it.text)
                if m: n = int(m.group(1)); vm = vm[len(vm) - n:] if n < len(vm) else vm
                if m and int(m.group(1)) == 0: vm = []
                m = re.search(r'lgkmcnt\((\d+)\)', it.text)
                if m:
                    n = int(m.group(1))
                    if n == 0: lg = []
                    elif not any(x[0] == 'smem' for x in lg) and n < len(lg): lg = lg[len(lg) - n:]
                out.append(it); continue
            vn = ln = None
            idx = max([i for i, x in enumerate(vm) if x & touched], default=None)
            if idx is not None: vn = min(63, len(vm) - 1 - idx)
            idx2 = max([i for i, x in enumerate(lg) if x[1] & touched], default=None)
            if idx2 is not None:
                ln = 0 if any(x[0] == 'smem' for x in lg) else min(15, len(lg) - 1 - idx2)
            if vn is not None or ln is not None:
                if not it.auto:
                    raise ValueError(f'{self.name}: missing wait (vm {vn}, lgkm {ln}) before: {it.text}')
                emit(vn, ln)
                if vn is not None: vm = vm[idx + 1:]
                if ln is not None: lg = [] if ln == 0 else lg[idx2 + 1:]
            if it.kind == 'vmem' and it.op not in ('buffer_wbl2', 'buffer_inv'): vm.append(set(it.w))
            if it.kind == 'ds': lg.append(('ds', set(it.w)))
            if it.kind == 'smem': lg.append(('smem', set(it.w)))
            if it.kind == 'branch':
                saved.setdefault(it.target, (list(vm), list(lg)))
                if it.op == 's_branch': live = False
            if it.op == 's_endpgm': live = False; vm = []; lg = []
            out.append(it)
        self.items = out
    def _hazards(self):
        changed = True
        while changed:
            changed = False
            items = self.items
            lab = {it.name: i for i, it in enumerate(items) if isinstance(it, Label)}
            preds = {}
            for i, it in enumerate(items):
                if isinstance(it, Ins) and it.kind == 'branch' and it.target in lab: preds.setdefault(lab[it.target], []).append(i)
            ins_at = {}
            for i, c in enumerate(items):
                if not isinstance(c, Ins) or c.op in ('s_nop', 's_waitcnt', 's_barrier', 's_endpgm'): continue
                need = 0
                stack = [(i - 1, 0)]; seen = {}
                while stack:
                    j, d = stack.pop()
                    while j >= 0 and d < 20:
                        if seen.get(j, 99) <= d: break
                        seen[j] = d
                        p = items[j]
                        if isinstance(p, Label):
                            for b in preds.get(j, []): stack.append((b, d))
                            j -= 1
                            if j >= 0 and isinstance(items[j], Ins) and items[j].op in ('s_branch', 's_endpgm'): break
                            continue
                        need = max(need, need_states(p, c) - d)
                        d += p.states(); j -= 1
                if need > 0: ins_at[i] = need
            if ins_at:
                out = []; last = -100
                for i, it in enumerate(items):
                    if i in ins_at and i - last > 20:
                        out.append(Ins(f's_nop {ins_at[i]-1}', True)); last = i
                    out.append(it)
                self.items = out; changed = True
    def sizes(self):
        src = '.amdgcn_target "amdgcn-amd-amdhsa--gfx950"\n.text\n' + f'{self.name}:\n' + '\n'.join(
            f'{it.name}:' if isinstance(it, Label) else it.text for it in self.items) + '\nk0_kernel:\ntabs:\ntabs_end:\n'
        if self.name == 'k0_kernel': src = src.replace('\nk0_kernel:\ntabs:', '\ntabs:')
        d = tempfile.mkdtemp(); open(d + '/a.s', 'w').write(src)
        subprocess.run(['clang', '-x', 'assembler', '-target', 'amdgcn-amd-amdhsa', '-mcpu=gfx950', '-c', d + '/a.s', '-o', d + '/a.o'], check=True)
        out = subprocess.run(['llvm-objdump', '-d', '--mcpu=gfx950', d + '/a.o'], capture_output=True, text=True, check=True).stdout
        sz = [len(l.split('//')[1].split(':')[1].split('<')[0].split()) * 4 for l in out.split('\n') if '//' in l]
        ins = [it for it in self.items if isinstance(it, Ins)]
        assert len(sz) == len(ins), (len(sz), len(ins))
        return dict(zip(map(id, ins), sz))
    def _page_stubs(self):
        lanes, back = self.page_touch
        tmp = [Label(self.L(f'pg{i}')) for i in range(lanes)]
        self.items += tmp; sz = self.sizes(); self.items = self.items[:-lanes]
        out = []; pos = 0; pages = []; active = False
        for it in self.items:
            if isinstance(it, Label) and it.name == back: active = True
            if isinstance(it, Ins):
                if active and it.op == 's_endpgm': active = False
                if active and pos // 4096 > (pages[-1][1] if pages else self._back_page):
                    pages.append((len(out), pos // 4096)); out.append(None); pos += 4
                if not active and not pages: self._back_page = pos // 4096
                pos += sz[id(it)]
            out.append(it)
        n = len(pages); assert n >= lanes
        res = []; idx = {p[0]: i for i, p in enumerate(pages)}
        for j, it in enumerate(out):
            if it is None:
                i = idx[j]; tgt = self.L(f'pg{i + lanes}') if i + lanes < n else back
                res += [Label(self.L(f'pg{i}')), Ins(f's_cbranch_vccnz {tgt}', True)]
            else: res.append(it)
        self.items = res
    def finalize(self):
        self._autowait(); self._hazards()
        if getattr(self, 'page_touch', None): self._page_stubs()
        self.nbytes = sum(self.sizes().values())
        body = []
        for it in self.items:
            body.append(f'{it.name}:' if isinstance(it, Label) else '    ' + it.text)
        mv = ma = ms = -1
        for it in self.items:
            if isinstance(it, Ins):
                for t, n in it.r | it.w:
                    if t == 'v': mv = max(mv, n)
                    elif t == 'a': ma = max(ma, n)
                    elif isinstance(n, int): ms = max(ms, n)
        self.accum = max(4, (mv + 4) // 4 * 4)
        self.vgpr = self.accum + ma + 1 if ma >= 0 else mv + 1
        if self.force_vgpr: self.vgpr = max(self.vgpr, self.force_vgpr)
        self.sgpr = ms + 1
        self.body = '\n'.join(body)
        return self
    def text(self):
        return f'.p2align 12\n.fill 832, 4, 0xbf800000\n.globl {self.name}\n.p2align 8\n.type {self.name},@function\n{self.name}:\n{self.body}\n'
    def desc(self):
        return (f'.p2align 6\n.amdhsa_kernel {self.name}\n  .amdhsa_next_free_vgpr {self.vgpr}\n'
                f'  .amdhsa_next_free_sgpr {self.sgpr}\n  .amdhsa_accum_offset {self.accum}\n'
                '  .amdhsa_group_segment_fixed_size 0\n  .amdhsa_kernarg_size 96\n'
                '  .amdhsa_user_sgpr_count 2\n  .amdhsa_user_sgpr_kernarg_segment_ptr 1\n'
                '  .amdhsa_system_sgpr_workgroup_id_x 1\n  .amdhsa_float_denorm_mode_32 3\n.end_amdhsa_kernel\n')

def module(launch_list, header='', data=''):
    ks = []
    for k in launch_list:
        if k not in ks: ks.append(k)
    s = header
    for k in launch_list:
        s += f'; @launch kernel={k.name} grid=({k.grid},1,1) block=({k.block},1,1) lds={k.lds}\n'
    s += '.amdgcn_target "amdgcn-amd-amdhsa--gfx950"\n.text\n'
    for k in ks: s += k.text()
    s += data
    s += '.section .rodata,"a"\n'
    for k in ks: s += k.desc()
    return s

def V(b, n=1): return f'v{b}' if n == 1 else f'v[{b}:{b+n-1}]'
def A(b, n=1): return f'a{b}' if n == 1 else f'a[{b}:{b+n-1}]'
def S(b, n=1): return f's{b}' if n == 1 else f's[{b}:{b+n-1}]'
```

```python
from asmgen import *
import layout as LY
ARG = dict(x=0, wr=8, wi=16, wg=32, wu=40, wd=48, c=56, wmod=64, out=72, dbg=80, ws=88)
STAMPS = False
OPT = {}

def begin(k, idx, ptrs):
    k.idx = idx
    if STAMPS:
        k.st0 = k.s(2); k(f's_memrealtime {S(k.st0,2)}')
        if 'ws' not in ptrs: ptrs = ptrs + ['ws']
    k(f's_cmp_ge_u32 s2, {getattr(k, "nwg", k.grid)}\ns_cbranch_scc1 {k.L("end")}')
    P = {}
    for p in ptrs:
        P[p] = k.s(2); k(f's_load_dwordx2 {S(P[p],2)}, s[0:1], {ARG[p]}')
    k.P = P
    return P

def stamp_mid(k):
    if STAMPS:
        if not hasattr(k, 'st1'): k.st1 = k.s(2)
        k(f's_memrealtime {S(k.st1,2)}')

def mark(k):
    if not STAMPS: return
    if not hasattr(k, 'mkv'): k.mkv = k.v(); k.mks = k.s(4); k.nmk = 0
    a = k.mks; i = k.nmk; k.nmk += 1
    k(f's_memtime {S(a,2)}\ns_memrealtime {S(a+2,2)}\ns_waitcnt lgkmcnt(0)\nv_writelane_b32 v{k.mkv}, s{a}, {2*i}\nv_writelane_b32 v{k.mkv}, s{a+2}, {2*i+1}')

def mark_loop(k, cnt, vals):
    if not STAMPS: return
    if not hasattr(k, 'mtmp'): k.mtmp = k.s(4)
    a = k.mtmp
    k(f's_memtime {S(a,2)}\ns_memrealtime {S(a+2,2)}\ns_waitcnt lgkmcnt(0)')
    for v in vals:
        x = k.s(); y = k.s(); k.marks.append((x, y))
        k(f's_cmp_eq_u32 s{cnt}, {v}\ns_cselect_b32 s{x}, s{a}, s{x}\ns_cselect_b32 s{y}, s{a+2}, s{y}')

def finish(k, last=True):
    if STAMPS:
        if not hasattr(k, 'st2'):
            k.st2 = k.s(2); k.st_srd = k.s(4); k.st_tmp = k.s(1)
        if not hasattr(k, 'st1'): k.st1 = k.st0
        au = k.auto; k.auto = True
        k(f's_waitcnt vmcnt(0) lgkmcnt(0)\ns_memrealtime {S(k.st2,2)}\ns_mov_b64 exec, -1')
        k.srd(k.P["ws"], 0x20000, LY.STAMP, d=k.st_srd)
        k(f'''s_lshl_b32 s{k.st_tmp}, s2, 4
        s_add_u32 s{k.st_tmp}, s{k.st_tmp}, {k.idx * 10240}
        v_mov_b32 v4, s{k.st0}
        v_mov_b32 v5, s{k.st1}
        v_mov_b32 v6, s{k.st2}
        v_mov_b32 v7, 0
        v_mov_b32 v8, s{k.st_tmp}
        buffer_store_dwordx4 v[4:7], v8, {S(k.st_srd,4)}, 0 offen''')
        if hasattr(k, 'mkv'):
            k(f'''s_lshl_b32 s{k.st_tmp}, s2, 8
            s_add_u32 s{k.st_tmp}, s{k.st_tmp}, {0x10000}
            v_mbcnt_lo_u32_b32 v12, -1, 0
            v_mbcnt_hi_u32_b32 v12, -1, v12
            v_lshlrev_b32 v12, 2, v12
            s_mov_b32 exec_lo, {((1 << (2 * k.nmk)) - 1) & 0xffffffff}
            s_mov_b32 exec_hi, {((1 << (2 * k.nmk)) - 1) >> 32}
            buffer_store_dword v{k.mkv}, v12, {S(k.st_srd,4)}, s{k.st_tmp} offen''')
        k.auto = au
    if last: k(f'{k.L("end")}:')
    k('s_endpgm')

_pc = [0]
def code_addr(k, expr, back=False):
    a = k.s(2); _pc[0] += 1; lab = k.L(f'pc{_pc[0]}')
    if back: k(f's_getpc_b64 {S(a,2)}\n{lab}:\ns_sub_u32 s{a}, s{a}, {lab}-{expr}\ns_subb_u32 s{a+1}, s{a+1}, 0')
    else: k(f's_getpc_b64 {S(a,2)}\n{lab}:\ns_add_u32 s{a}, s{a}, {expr}-{lab}\ns_addc_u32 s{a+1}, s{a+1}, 0')
    return a

class Tabs:
    def __init__(self, k, lane16, first, soff=None):
        self.k = k; self.lane16 = lane16; self.first = first; self.bases = {}
        self.sa = code_addr(k, f'tabs+{(first + 4) * 1024}')
        if soff is not None: k(f's_add_u32 s{self.sa}, s{self.sa}, s{soff}\ns_addc_u32 s{self.sa+1}, s{self.sa+1}, 0')
        self.cur = 0
    def load(self, dst, fr):
        k = self.k; rel = fr - self.first; grp = rel // 8
        if grp not in self.bases:
            while self.cur < grp:
                k(f's_add_u32 s{self.sa}, s{self.sa}, 8192\ns_addc_u32 s{self.sa+1}, s{self.sa+1}, 0'); self.cur += 1
            assert self.cur == grp
            b = k.v(2); self.bases[grp] = b
            k(f'v_lshl_add_u64 {V(b,2)}, {V(self.lane16,2)}, 0, {S(self.sa,2)}')
        k(f'global_load_dwordx4 {dst}, {V(self.bases[grp],2)}, off offset:{(rel % 8) * 1024 - 4096}')

def wave_id(k, dst_s, tmp_v):
    k(f'v_lshrrev_b32 v{tmp_v}, 6, v0\nv_readfirstlane_b32 s{dst_s}, v{tmp_v}')

def red16(k, regs, tmp=None):
    for pat in ('quad_perm:[1,0,3,2]', 'quad_perm:[2,3,0,1]', 'row_half_mirror', 'row_mirror'):
        for r in regs: k(f'v_add_f32_dpp v{r}, v{r}, v{r} {pat} row_mask:0xf bank_mask:0xf')
def red_swap(k, regs, tmps, which):
    for r, t in zip(regs, tmps): k(f'v_mov_b32 v{t}, v{r}')
    for r, t in zip(regs, tmps): k(f'v_permlane{which}_swap_b32 v{r}, v{t}')
    for r, t in zip(regs, tmps): k(f'v_add_f32 v{r}, v{r}, v{t}')

PF = dict(k1=(147, 243), k2=(75, 147), k3=(0, 75), k4a=(0, 128), k4b=(128, 243))
def weight_prefetch(k, key, sw, wpw, lane):
    lo, hi = OPT.get('pf_' + key, PF[key])
    if hi <= lo: return
    ns0 = k.ns
    P = k.P; I = k.s(); g = k.s(); a = k.s(); b = k.s(); d = k.s(4); t = k.v(3); dst = k.v()
    wd = k.L('pfwd' + key); go = k.L('pfgo' + key)
    k(f'''s_lshr_b32 s{I}, s2, 3
    s_mul_i32 s{I}, s{I}, {wpw}
    s_add_u32 s{I}, s{I}, s{sw}
    s_add_u32 s{I}, s{I}, {lo}
    s_cmp_ge_u32 s{I}, {hi}
    s_cselect_b32 s{d+2}, 0, {576*4608*2}
    s_and_b32 s{a}, s2, 7
    s_mov_b32 s{d+3}, 0x20000
    s_cmp_ge_u32 s{I}, 162
    s_cbranch_scc1 {wd}
    s_mul_i32 s{g}, s{I}, 2428
    s_lshr_b32 s{g}, s{g}, 16
    s_mul_i32 s{b}, s{g}, 27
    s_sub_u32 s{I}, s{I}, s{b}
    s_lshl_b32 s{I}, s{I}, 6
    v_add_u32 v{t}, s{I}, v{lane}
    v_mul_u32_u24 v{t+1}, 21846, v{t}
    v_lshrrev_b32 v{t+1}, 16, v{t+1}
    v_mul_u32_u24 v{t+2}, {9216 - 384}, v{t+1}
    v_lshl_add_u32 v{t}, v{t}, 7, v{t+2}
    s_mul_i32 s{a}, s{a}, 1152
    s_lshr_b32 s{b}, s{g}, 1
    s_mul_i32 s{b}, s{b}, 384
    s_add_u32 s{a}, s{a}, s{b}
    s_bitcmp1_b32 s{g}, 0
    s_cselect_b32 s{d}, s{P['wu']}, s{P['wg']}
    s_cselect_b32 s{d+1}, s{P['wu']+1}, s{P['wg']+1}
    s_branch {go}
    {wd}:
    s_sub_u32 s{I}, s{I}, 162
    s_lshl_b32 s{I}, s{I}, 13
    s_mul_i32 s{a}, s{a}, {576*1152}
    s_add_u32 s{a}, s{a}, s{I}
    v_lshlrev_b32 v{t}, 7, v{lane}
    s_mov_b32 s{d}, s{P['wd']}
    s_mov_b32 s{d+1}, s{P['wd']+1}
    {go}:
    buffer_load_dword v{dst}, v{t}, {S(d,4)}, s{a} offen''')
    if OPT.get('pf64'): k(f'buffer_load_dword v{k.v()}, v{t}, {S(d,4)}, s{a} offen offset:64')
    k.ns = ns0
```

```python
import sys, importlib
sys.path.insert(0, 'gen')
import common, layout
from asmgen import module
DESC = """; Generated by my own scripts (register naming, wait counts and wait states are derived by the generator).
"""
def make(out, names, stamps=False):
    common.STAMPS = stamps
    common.IDX.update({n: i for i, n in enumerate(names)})
    cache = {}
    for n in names:
        if n not in cache: cache[n] = importlib.import_module(n).build()
    ks = [cache[n] for n in names]
    hdr = open('adaLN_cond__spectral_gfnet__glu_gated_reglu__prompt.s.ref').read().split('; Override launch')[0]
    hdr += DESC
    open(out, 'w').write(module(ks, header=hdr, data=layout.tabs_asm()))
    for k in ks: print(k.name, 'vgpr', k.vgpr, 'accum', k.accum, 'sgpr', k.sgpr, 'lds', k.lds, 'ins', len(k.items), 'bytes', k.nbytes)
if __name__ == '__main__':
    out = sys.argv[1]; names = sys.argv[2].split(',')
    for a in sys.argv[3:]:
        if '=' in a:
            kk, v = a.split('='); mod, key = kk.split('.')
            importlib.import_module(mod).OPT[key] = eval(v)
    make(out, names, stamps='stamp' in sys.argv[3:])
```

```python
import re, struct, subprocess, os, tempfile

def f2u(x): return struct.unpack('<I', struct.pack('<f', x))[0]
def fhex(x): return hex(f2u(x))

_REG = re.compile(r'(?<![\w.])(-|\|)?([vas])(?:\[(\d+):(\d+)\]|(\d+))(?![\w])')
TRANS = ('v_exp_f32', 'v_log_f32', 'v_rcp_f32', 'v_rsq_f32', 'v_sqrt_f32', 'v_sin_f32', 'v_cos_f32', 'v_rcp_iflag_f32')

def regs_of(tok):
    out = []
    tok = tok.strip()
    for m in _REG.finditer(tok):
        t = m.group(2)
        if m.group(5) is not None: lo = hi = int(m.group(5))
        else: lo, hi = int(m.group(3)), int(m.group(4))
        out += [(t, i) for i in range(lo, hi + 1)]
    if re.search(r'\bvcc(_lo|_hi)?\b', tok): out += [('s', 'vcc')]
    if re.search(r'\bexec(_lo|_hi)?\b', tok): out += [('s', 'exec')]
    if re.search(r'\bm0\b', tok): out += [('s', 'm0')]
    return out

def split_ops(s):
    ops, depth, cur = [], 0, ''
    for ch in s:
        if ch in '[(': depth += 1
        if ch in '])': depth -= 1
        if ch == ',' and depth == 0: ops.append(cur.strip()); cur = ''
        else: cur += ch
    if cur.strip(): ops.append(cur.strip())
    return ops

class Ins:
    __slots__ = ('text', 'op', 'ops', 'w', 'r', 'kind', 'auto', 'srcC', 'srcAB', 'passes', 'target', 'lds', 'wide_data', 'mods')
    def __init__(self, text, auto):
        self.text = text; self.auto = auto
        code = text.split(';')[0].strip()
        parts = code.split(None, 1)
        self.op = op = parts[0]
        rest = parts[1] if len(parts) > 1 else ''
        ops = split_ops(rest)
        self.mods = ''
        if ops and not op.startswith('s_waitcnt'):
            last = ops[-1].split(None, 1)
            if len(last) > 1 and not last[0].endswith('('):
                ops[-1] = last[0]; self.mods = last[1]
        self.ops = ops
        R = [regs_of(o) for o in ops]
        flat = lambda L: [x for l in L for x in l]
        w, r = [], []
        self.srcC = []; self.srcAB = []; self.passes = 0; self.target = None; self.lds = False; self.wide_data = []
        base = re.sub(r'_(e32|e64|dpp|sdwa)$', '', op)
        if op.startswith('v_mfma'):
            kind = 'mfma'; w = R[0]; self.srcAB = R[1] + R[2]; self.srcC = R[3]; r = self.srcAB + self.srcC
            self.passes = 8 if '32x32x16' in op or '32x32x8' in op else 4
            assert ('16x16x32' in op or '32x32x16' in op or '16x16x16' in op), op
        elif op.startswith('v_'):
            kind = 'valu'
            if base.startswith('v_cmpx'): raise ValueError('v_cmpx not supported')
            if base in ('v_nop',): pass
            elif base.startswith('v_permlane') and 'swap' in base or base == 'v_swap_b32':
                w = R[0] + R[1]; r = R[0] + R[1]
            elif '_co_' in base or base in ('v_div_scale_f32', 'v_mad_u64_u32'):
                w = R[0] + R[1]; r = flat(R[2:])
            else:
                w = R[0]; r = flat(R[1:])
                if base in ('v_fmac_f32', 'v_pk_fmac_f16', 'v_dot2c_f32_bf16', 'v_writelane_b32') or op.endswith('_dpp'): r = r + R[0]
                if base == 'v_cndmask_b32' and len(ops) == 3: r = r + [('s', 'vcc')]
        elif op.startswith('ds_'):
            kind = 'ds'
            if op.startswith('ds_read') or 'permute' in op or op.startswith('ds_swizzle'):
                w = R[0]; r = flat(R[1:])
                if '_d16' in op: r = r + R[0]
            else: r = flat(R)
        elif op.startswith('buffer_') or op.startswith('global_'):
            kind = 'vmem'
            self.lds = (' lds' in ' ' + self.mods) or '_lds_' in op
            if op in ('buffer_wbl2', 'buffer_inv'): pass
            elif self.lds: r = flat(R) + [('s', 'm0')]
            elif '_load_' in op:
                w = R[0]; r = flat(R[1:])
                if '_d16' in op: r = r + R[0]
            elif '_store_' in op:
                r = flat(R)
                if op.endswith('x3') or op.endswith('x4'): self.wide_data = R[0] if op.startswith('buffer_') else R[1]
            elif '_atomic_' in op:
                r = flat(R)
                if 'sc0' in self.mods: w = R[0]; r = (flat(R) if op.startswith('buffer_') else flat(R[1:]))
            else: raise ValueError(op)
        elif op.startswith('s_load') or op.startswith('s_buffer_load') or op in ('s_memtime', 's_memrealtime'):
            kind = 'smem'; w = R[0]; r = flat(R[1:])
        elif op.startswith('s_'):
            kind = 'salu'
            if op in ('s_branch',) or op.startswith('s_cbranch'):
                kind = 'branch'; self.target = ops[0]
                if 'vcc' in op: r = [('s', 'vcc')]
                if 'exec' in op: r = [('s', 'exec')]
            elif op.startswith('s_cmp') or op.startswith('s_bitcmp'): r = flat(R)
            elif op in ('s_waitcnt', 's_nop', 's_barrier', 's_endpgm', 's_setprio', 's_sleep'): pass
            elif 'saveexec' in op: w = R[0] + [('s', 'exec')]; r = flat(R[1:]) + [('s', 'exec')]
            else:
                w = R[0] if R else []; r = flat(R[1:])
                if op in ('s_addk_i32', 's_mulk_i32', 's_cmov_b32', 's_cmov_b64'): r = r + w
        else:
            raise ValueError('unknown instruction: ' + text)
        self.kind = kind; self.w = set(w); self.r = set(r)
    def states(self):
        if self.op == 's_nop': return int(self.ops[0], 0) + 1
        return 1

class Label:
    def __init__(self, name, align=False): self.name = name; self.align = align

def need_states(p, c):
    n = 0
    vw = {x for x in p.w if x[0] in 'va'}; sw = {x for x in p.w if x[0] == 's'}
    cbase = re.sub(r'_(e32|e64|dpp|sdwa)$', '', c.op)
    if p.kind == 'valu':
        pbase = re.sub(r'_(e32|e64|dpp|sdwa)$', '', p.op)
        if vw:
            if c.kind == 'mfma' and vw & c.r: n = max(n, 2)
            if c.kind == 'valu':
                if c.op.endswith('_dpp') and vw & c.r: n = max(n, 2)
                if cbase.startswith('v_permlane') and vw & c.r: n = max(n, 2)
                if cbase in ('v_readfirstlane_b32', 'v_readlane_b32') and vw & c.r: n = max(n, 1)
                if pbase in TRANS and vw & c.r: n = max(n, 1)
                if (p.op.endswith('_sdwa') or (pbase.startswith('v_cvt') and 'op_sel' in p.mods)) and vw & (c.r | c.w): n = max(n, 1)
            if pbase in TRANS and c.kind in ('ds', 'vmem') and vw & c.r: n = max(n, 1)
        if sw:
            if c.kind == 'valu' and sw & c.r:
                n = max(n, 4 if cbase in ('v_readlane_b32', 'v_writelane_b32', 'v_div_fmas_f32') else 2)
            if c.kind == 'vmem' and sw & c.r: n = max(n, 5)
            if c.kind in ('salu', 'smem', 'branch') and sw & c.r: n = max(n, 2)
            if c.kind == 'mfma' and ('s', 'exec') in sw: n = max(n, 4)
    if p.kind == 'salu' and ('s', 'm0') in p.w and c.kind == 'vmem' and c.lds: n = max(n, 1)
    if p.kind == 'vmem' and p.wide_data and set(p.wide_data) & c.w:
        n = max(n, 2 if c.kind in ('valu', 'mfma') else 1)
    if p.kind == 'mfma':
        big = p.passes == 8
        if c.kind == 'mfma':
            if p.w & set(c.srcAB): n = max(n, 12 if big else 8)
            if p.w & set(c.srcC):
                same = (p.w == set(c.srcC) and p.passes == c.passes)
                if not same: n = max(n, 10 if big else 6)
            elif p.w & c.w: n = max(n, 10 if big else 6)
        elif c.kind in ('valu', 'vmem', 'ds'):
            if p.w & (c.r | c.w): n = max(n, 12 if big else 8)
            if c.kind == 'valu' and set(p.srcC) & c.w: n = max(n, 7 if big else 3)
    return n

class Kern:
    def __init__(self, name, lds=0, block=256, grid=256):
        self.name = name; self.items = []; self.auto = True
        self.lds = lds; self.block = block; self.grid = grid
        self.nv = 0; self.na = 0; self.ns = 4; self.vfree = []
        self.force_vgpr = None
    def v(self, n=1, align=None):
        align = align or (1 if n == 1 else 2)
        b = (self.nv + align - 1) // align * align
        self.nv = b + n; assert self.nv <= 256, 'out of VGPRs'
        return b
    def a(self, n=1, align=None):
        align = align or (1 if n == 1 else 2)
        b = (self.na + align - 1) // align * align
        self.na = b + n; assert self.na <= 256, 'out of AGPRs'
        return b
    def s(self, n=1, align=None):
        if n == 1 and getattr(self, 'sfree', None): return self.sfree.pop()
        align = align or (1 if n == 1 else (2 if n == 2 else 4))
        b = (self.ns + align - 1) // align * align
        self.ns = b + n; assert self.ns <= 100, 'out of SGPRs'
        return b
    def __call__(self, s):
        for l in s.split('\n'):
            l = l.strip()
            if not l or l.startswith(';'): continue
            if l.endswith(':'): self.items.append(Label(l[:-1]))
            else: self.items.append(Ins(l, self.auto))
    def align(self):
        self._nal = getattr(self, '_nal', 0) + 1; self.items.append(Label(self.L(f'al{self._nal}'), True))
    def L(self, n): return f'{self.name}_{n}'
    def srd(self, ptr, nbytes, off=0, d=None):
        d = self.s(4) if d is None else d
        if off > 0: self(f's_add_u32 s{d}, s{ptr}, {off}\ns_addc_u32 s{d+1}, s{ptr+1}, 0')
        elif off < 0: self(f's_sub_u32 s{d}, s{ptr}, {-off}\ns_subb_u32 s{d+1}, s{ptr+1}, 0')
        else: self(f's_mov_b32 s{d}, s{ptr}\ns_mov_b32 s{d+1}, s{ptr+1}')
        self(f's_mov_b32 s{d+2}, {nbytes}\ns_mov_b32 s{d+3}, 0x20000')
        return d
    def _autowait(self):
        out = []; vm = []; lg = []; saved = {}; live = True
        def emit(vn, ln):
            t = 's_waitcnt' + (f' vmcnt({vn})' if vn is not None else '') + (f' lgkmcnt({ln})' if ln is not None else '')
            out.append(Ins(t, True))
        for it in self.items:
            if isinstance(it, Label):
                if it.name in saved:
                    svm, slg = saved[it.name]
                    if not live: vm, lg = list(svm), list(slg)
                    else:
                        if [x for x in svm if x] != [x for x in vm if x] or len(svm) != len(vm): vm = [set().union(*vm, *svm)] if (vm or svm) else []
                        if slg != lg: lg = [('smem', set().union(*[x[1] for x in lg + slg]))] if (lg or slg) else []
                live = True; out.append(it); continue
            touched = it.r | it.w
            if it.op == 's_waitcnt':
                m = re.search(r'vmcnt\((\d+)\)', it.text)
                if m: n = int(m.group(1)); vm = vm[len(vm) - n:] if n < len(vm) else vm
                if m and int(m.group(1)) == 0: vm = []
                m = re.search(r'lgkmcnt\((\d+)\)', it.text)
                if m:
                    n = int(m.group(1))
                    if n == 0: lg = []
                    elif not any(x[0] == 'smem' for x in lg) and n < len(lg): lg = lg[len(lg) - n:]
                out.append(it); continue
            vn = ln = None
            idx = max([i for i, x in enumerate(vm) if x & (it.r if it.kind == 'vmem' else touched)], default=None)
            if it.auto == 'raw': idx = None
            if idx is not None: vn = min(63, len(vm) - 1 - idx)
            idx2 = max([i for i, x in enumerate(lg) if x[1] & touched], default=None)
            if idx2 is not None:
                ln = 0 if any(x[0] == 'smem' for x in lg) else min(15, len(lg) - 1 - idx2)
            if vn is not None or ln is not None:
                if not it.auto:
                    raise ValueError(f'{self.name}: missing wait (vm {vn}, lgkm {ln}) before: {it.text}')
                emit(vn, ln)
                if vn is not None: vm = vm[idx + 1:]
                if ln is not None: lg = [] if ln == 0 else lg[idx2 + 1:]
            if it.kind == 'vmem' and it.op not in ('buffer_wbl2', 'buffer_inv'): vm.append(set(it.w))
            if it.kind == 'ds': lg.append(('ds', set(it.w)))
            if it.kind == 'smem': lg.append(('smem', set(it.w)))
            if it.kind == 'branch':
                saved.setdefault(it.target, (list(vm), list(lg)))
                if it.op == 's_branch': live = False
            if it.op == 's_endpgm': live = False; vm = []; lg = []
            out.append(it)
        self.items = out
    def _hazards(self):
        changed = True
        while changed:
            changed = False
            items = self.items
            lab = {it.name: i for i, it in enumerate(items) if isinstance(it, Label)}
            preds = {}
            for i, it in enumerate(items):
                if isinstance(it, Ins) and it.kind == 'branch' and it.target in lab: preds.setdefault(lab[it.target], []).append(i)
            ins_at = {}
            for i, c in enumerate(items):
                if not isinstance(c, Ins) or c.op in ('s_nop', 's_waitcnt', 's_barrier', 's_endpgm'): continue
                need = 0
                stack = [(i - 1, 0)]; seen = {}
                while stack:
                    j, d = stack.pop()
                    while j >= 0 and d < 20:
                        if seen.get(j, 99) <= d: break
                        seen[j] = d
                        p = items[j]
                        if isinstance(p, Label):
                            for b in preds.get(j, []): stack.append((b, d))
                            j -= 1
                            if j >= 0 and isinstance(items[j], Ins) and items[j].op in ('s_branch', 's_endpgm'): break
                            continue
                        need = max(need, need_states(p, c) - d)
                        d += p.states(); j -= 1
                if need > 0: ins_at[i] = need
            if ins_at:
                out = []; last = -100
                for i, it in enumerate(items):
                    if i in ins_at and i - last > 20:
                        out.append(Ins(f's_nop {ins_at[i]-1}', True)); last = i
                    out.append(it)
                self.items = out; changed = True
    def sizes(self):
        src = '.amdgcn_target "amdgcn-amd-amdhsa--gfx950"\n.text\n' + f'{self.name}:\n' + '\n'.join(
            f'{it.name}:' if isinstance(it, Label) else it.text for it in self.items) + '\n'
        have = {self.name} | {it.name for it in self.items if isinstance(it, Label)}
        src += ''.join(f'{n}:\n' for n in ('k0_kernel', 'k2_kernel', 'k4_kernel', 'warm_k2_kernel', 'warm_k4_kernel', 'tabs', 'tabs_end') if n not in have)
        d = tempfile.mkdtemp(); open(d + '/a.s', 'w').write(src)
        subprocess.run(['clang', '-x', 'assembler', '-target', 'amdgcn-amd-amdhsa', '-mcpu=gfx950', '-c', d + '/a.s', '-o', d + '/a.o'], check=True)
        out = subprocess.run(['llvm-objdump', '-d', '--mcpu=gfx950', d + '/a.o'], capture_output=True, text=True, check=True).stdout
        sz = [len(l.split('//')[1].split(':')[1].split('<')[0].split()) * 4 for l in out.split('\n') if '//' in l]
        ins = [it for it in self.items if isinstance(it, Ins)]
        assert len(sz) == len(ins), (len(sz), len(ins))
        return dict(zip(map(id, ins), sz))
    def _page_stubs(self):
        tmp = [Label(f'{pre}{i}') for pre, lanes, back, lo, hi in self.page_touch for i in range(lanes)]
        self.items += tmp; sz = self.sizes(); self.items = self.items[:-len(tmp)]
        out = []; pos = 0; pages = {}; done = False
        for it in self.items:
            if isinstance(it, Ins):
                if not done and pos // 4096 > max(pages, default=0):
                    pages[pos // 4096] = len(out); out.append(None); pos += 4
                if it.op == 's_endpgm': done = True
                pos += sz[id(it)]
            out.append(it)
        stub = {}; extra = []
        for pre, lanes, back, lo, hi in self.page_touch:
            pg = [p for p in sorted(pages) if lo <= p <= hi]
            for i, p in enumerate(pg): stub[pages[p]] = (f'{pre}{i}', f'{pre}{i + lanes}' if i + lanes < len(pg) else back)
            assert len(pg) >= lanes, (pg, lanes)
        res = []
        for j, it in enumerate(out):
            if it is None: res += [Label(stub[j][0]), Ins(f's_cbranch_execz {stub[j][1]}', True)]
            else: res.append(it)
        self.items = res
    def touch(self, sw, lanes, lo, hi):
        self.page_touch = getattr(self, 'page_touch', []); r = len(self.page_touch)
        pre, back = self.L(f'pg{r}_'), self.L(f'back{r}')
        self.page_touch.append((pre, lanes, back, lo, hi))
        self('s_mov_b64 exec, 0')
        for i in range(lanes - 1): self(f's_cmp_eq_u32 s{sw}, {i}\ns_cbranch_scc1 {pre}{i}')
        self(f's_branch {pre}{lanes - 1}\n{back}:\ns_mov_b64 exec, -1')
    def finalize(self):
        self._autowait(); self._hazards()
        if getattr(self, 'page_touch', None): self._page_stubs()
        self.nbytes = sum(self.sizes().values())
        body = []
        for it in self.items:
            body.append(('.p2align 12\n' if it.align else '') + f'{it.name}:' if isinstance(it, Label) else '    ' + it.text)
        mv = ma = ms = -1
        for it in self.items:
            if isinstance(it, Ins):
                for t, n in it.r | it.w:
                    if t == 'v': mv = max(mv, n)
                    elif t == 'a': ma = max(ma, n)
                    elif isinstance(n, int): ms = max(ms, n)
        self.accum = max(4, (mv + 4) // 4 * 4)
        self.vgpr = self.accum + ma + 1 if ma >= 0 else mv + 1
        if self.force_vgpr: self.vgpr = max(self.vgpr, self.force_vgpr)
        self.sgpr = ms + 1
        self.body = '\n'.join(body)
        return self
    def text(self):
        return f'.p2align 12\n.fill 832, 4, 0xbf800000\n.globl {self.name}\n.p2align 8\n.type {self.name},@function\n{self.name}:\n{self.body}\n'
    def desc(self):
        return (f'.p2align 6\n.amdhsa_kernel {self.name}\n  .amdhsa_next_free_vgpr {self.vgpr}\n'
                f'  .amdhsa_next_free_sgpr {self.sgpr}\n  .amdhsa_accum_offset {self.accum}\n'
                '  .amdhsa_group_segment_fixed_size 0\n  .amdhsa_kernarg_size 96\n'
                '  .amdhsa_user_sgpr_count 2\n  .amdhsa_user_sgpr_kernarg_segment_ptr 1\n'
                '  .amdhsa_system_sgpr_workgroup_id_x 1\n  .amdhsa_float_denorm_mode_32 3\n.end_amdhsa_kernel\n')

def module(launch_list, header='', data=''):
    ks = []
    for k in launch_list:
        if k not in ks: ks.append(k)
    s = header
    for k in launch_list:
        s += f'; @launch kernel={k.name} grid=({k.grid},1,1) block=({k.block},1,1) lds={k.lds}\n'
    s += '.amdgcn_target "amdgcn-amd-amdhsa--gfx950"\n.text\n'
    for k in ks: s += k.text()
    s += data
    s += '.section .rodata,"a"\n'
    for k in ks: s += k.desc()
    return s

def V(b, n=1): return f'v{b}' if n == 1 else f'v[{b}:{b+n-1}]'
def A(b, n=1): return f'a{b}' if n == 1 else f'a[{b}:{b+n-1}]'
def S(b, n=1): return f's{b}' if n == 1 else f's[{b}:{b+n-1}]'
```

```python
from asmgen import *
import layout as LY
ARG = dict(x=0, wr=8, wi=16, wg=32, wu=40, wd=48, c=56, wmod=64, out=72, dbg=80, ws=88)
STAMPS = False
OPT = {}

def begin(k, idx, ptrs):
    k.idx = idx
    if STAMPS:
        k.st0 = k.s(2); k(f's_memrealtime {S(k.st0,2)}')
        if k.name != 'k4_kernel': k.st2 = k.s(2); k.st_srd = k.s(4); k.st_tmp = k.s(1)
        if 'ws' not in ptrs: ptrs = ptrs + ['ws']
    k(f's_cmp_ge_u32 s2, {getattr(k, "nwg", k.grid)}\ns_cbranch_scc1 {k.L("end")}')
    P = {}
    for p in ptrs:
        P[p] = k.s(2); k(f's_load_dwordx2 {S(P[p],2)}, s[0:1], {ARG[p]}')
    k.P = P
    return P

def stamp_mid(k):
    if STAMPS:
        if not hasattr(k, 'st1'): k.st1 = k.s(2)
        k(f's_memrealtime {S(k.st1,2)}')

def mark(k):
    if not STAMPS or OPT.get('mkk', 'k4_kernel') != k.name: return
    if not hasattr(k, 'mkv'): k.mkv = k.v(); k.mks = k.s(4); k.nmk = 0
    a = k.mks; i = k.nmk; k.nmk += 1
    k(f's_memtime {S(a,2)}\ns_memrealtime {S(a+2,2)}\ns_waitcnt lgkmcnt(0)\nv_writelane_b32 v{k.mkv}, s{a}, {2*i}\nv_writelane_b32 v{k.mkv}, s{a+2}, {2*i+1}')

def mark_loop(k, cnt, vals):
    if not STAMPS: return
    if not hasattr(k, 'mtmp'): k.mtmp = k.s(4)
    a = k.mtmp
    k(f's_memtime {S(a,2)}\ns_memrealtime {S(a+2,2)}\ns_waitcnt lgkmcnt(0)')
    for v in vals:
        x = k.s(); y = k.s(); k.marks.append((x, y))
        k(f's_cmp_eq_u32 s{cnt}, {v}\ns_cselect_b32 s{x}, s{a}, s{x}\ns_cselect_b32 s{y}, s{a+2}, s{y}')

def finish(k, last=True):
    if STAMPS:
        if not hasattr(k, 'st2'):
            k.st2 = k.s(2); k.st_srd = k.s(4); k.st_tmp = k.s(1)
        if not hasattr(k, 'st1'): k.st1 = k.st0
        au = k.auto; k.auto = True
        k(f's_waitcnt vmcnt(0) lgkmcnt(0)\ns_memrealtime {S(k.st2,2)}\ns_mov_b64 exec, -1')
        k.srd(k.P["ws"], 0x20000, LY.STAMP, d=k.st_srd)
        k(f'''s_lshl_b32 s{k.st_tmp}, s2, 4
        s_add_u32 s{k.st_tmp}, s{k.st_tmp}, {k.idx * 10240}
        v_mov_b32 v4, s{k.st0}
        v_mov_b32 v5, s{k.st1}
        v_mov_b32 v6, s{k.st2}
        v_mov_b32 v7, 0
        v_mov_b32 v8, s{k.st_tmp}
        buffer_store_dwordx4 v[4:7], v8, {S(k.st_srd,4)}, 0 offen''')
        if hasattr(k, 'mkv'):
            k(f'''s_lshl_b32 s{k.st_tmp}, s2, 8
            s_add_u32 s{k.st_tmp}, s{k.st_tmp}, {0x10000}
            v_mbcnt_lo_u32_b32 v12, -1, 0
            v_mbcnt_hi_u32_b32 v12, -1, v12
            v_lshlrev_b32 v12, 2, v12
            s_mov_b32 exec_lo, {((1 << (2 * k.nmk)) - 1) & 0xffffffff}
            s_mov_b32 exec_hi, {((1 << (2 * k.nmk)) - 1) >> 32}
            buffer_store_dword v{k.mkv}, v12, {S(k.st_srd,4)}, s{k.st_tmp} offen''')
        k.auto = au
    if last: k(f'{k.L("end")}:')
    k('s_endpgm')

_pc = [0]
def code_addr(k, expr, back=False):
    a = k.s(2); _pc[0] += 1; lab = k.L(f'pc{_pc[0]}')
    if back: k(f's_getpc_b64 {S(a,2)}\n{lab}:\ns_sub_u32 s{a}, s{a}, {lab}-{expr}\ns_subb_u32 s{a+1}, s{a+1}, 0')
    else: k(f's_getpc_b64 {S(a,2)}\n{lab}:\ns_add_u32 s{a}, s{a}, {expr}-{lab}\ns_addc_u32 s{a+1}, s{a+1}, 0')
    return a

class Tabs:
    def __init__(self, k, lane16, first, soff=None):
        self.k = k; self.lane16 = lane16; self.first = first; self.bases = {}
        self.sa = code_addr(k, f'tabs+{(first + 4) * 1024}')
        if soff is not None: k(f's_add_u32 s{self.sa}, s{self.sa}, s{soff}\ns_addc_u32 s{self.sa+1}, s{self.sa+1}, 0')
        self.cur = 0
    def load(self, dst, fr):
        k = self.k; rel = fr - self.first; grp = rel // 8
        if grp not in self.bases:
            while self.cur < grp:
                k(f's_add_u32 s{self.sa}, s{self.sa}, 8192\ns_addc_u32 s{self.sa+1}, s{self.sa+1}, 0'); self.cur += 1
            assert self.cur == grp
            b = k.v(2); self.bases[grp] = b
            k(f'v_lshl_add_u64 {V(b,2)}, {V(self.lane16,2)}, 0, {S(self.sa,2)}')
        k(f'global_load_dwordx4 {dst}, {V(self.bases[grp],2)}, off offset:{(rel % 8) * 1024 - 4096}')

def wave_id(k, dst_s, tmp_v):
    k(f'v_lshrrev_b32 v{tmp_v}, 6, v0\nv_readfirstlane_b32 s{dst_s}, v{tmp_v}')

def red16(k, regs, tmp=None):
    for pat in ('quad_perm:[1,0,3,2]', 'quad_perm:[2,3,0,1]', 'row_half_mirror', 'row_mirror'):
        for r in regs: k(f'v_add_f32_dpp v{r}, v{r}, v{r} {pat} row_mask:0xf bank_mask:0xf')
def red_swap(k, regs, tmps, which):
    for r, t in zip(regs, tmps): k(f'v_mov_b32 v{t}, v{r}')
    for r, t in zip(regs, tmps): k(f'v_permlane{which}_swap_b32 v{r}, v{t}')
    for r, t in zip(regs, tmps): k(f'v_add_f32 v{r}, v{r}, v{t}')

PF = dict(k2=(0, 0), k3=(0, 72), k4a=(72, 200), k4b=(200, 243))
def weight_prefetch(k, key, sw, wpw, lane, defer=False, tag='', ybase=0):
    lo, hi = OPT.get('pf_' + key, PF[key])
    if hi <= lo: return None
    P = k.P; a = k.s(); d = k.s(4); t = k.v()
    ns0 = k.ns; I = k.s(); g = k.s(); b = k.s()
    wd = k.L('pfwd' + key + tag); go = k.L('pfgo' + key + tag)
    k(f'''s_lshr_b32 s{I}, s2, 3
    s_sub_u32 s{I}, s{I}, {ybase}
    s_cmp_ge_u32 s{I}, {32 if wpw == 4 else wpw}
    s_cselect_b32 s{I}, 999, s{I}
    s_mul_i32 s{g}, s{sw}, {32 if wpw == 4 else wpw}
    s_add_u32 s{I}, s{I}, s{g}
    s_add_u32 s{I}, s{I}, {lo}
    s_cmp_ge_u32 s{I}, {hi}
    s_cselect_b32 s{d+2}, 0, {576*4608*2}
    s_and_b32 s{a}, s2, 7
    s_mov_b32 s{d+3}, 0x20000
    s_cmp_ge_u32 s{I}, 162
    s_cbranch_scc1 {wd}
    s_mul_i32 s{g}, s{I}, 7282
    s_lshr_b32 s{g}, s{g}, 16
    s_mul_i32 s{b}, s{g}, 9
    s_sub_u32 s{I}, s{I}, s{b}
    s_mul_i32 s{I}, s{I}, {64*9216}
    v_mul_u32_u24 v{t}, 9216, v{lane}
    s_mul_i32 s{a}, s{a}, 1152
    s_add_u32 s{a}, s{a}, s{I}
    s_lshr_b32 s{b}, s{g}, 2
    s_lshl_b32 s{b}, s{b}, 7
    s_add_u32 s{a}, s{a}, s{b}
    s_bfe_u32 s{b}, s{g}, 0x10001
    s_mul_i32 s{b}, s{b}, 640
    s_add_u32 s{a}, s{a}, s{b}
    s_bitcmp1_b32 s{g}, 0
    s_cselect_b32 s{d}, s{P['wu']}, s{P['wg']}
    s_cselect_b32 s{d+1}, s{P['wu']+1}, s{P['wg']+1}
    s_branch {go}
    {wd}:
    s_sub_u32 s{I}, s{I}, 162
    s_lshl_b32 s{I}, s{I}, 13
    s_mul_i32 s{a}, s{a}, {576*1152}
    s_add_u32 s{a}, s{a}, s{I}
    v_lshlrev_b32 v{t}, 7, v{lane}
    s_mov_b32 s{d}, s{P['wd']}
    s_mov_b32 s{d+1}, s{P['wd']+1}
    {go}:''')
    k.ns = ns0
    ld = f'buffer_load_dword v{t}, v{t}, {S(d,4)}, s{a} offen'
    if defer: return t, d, a
    k(ld)

def STAMPS_ON(): return STAMPS

class TabDMA:
    def __init__(self, k, l16, sw, first, n, ldsoff, nw=4):
        per = (n + nw - 1) // nw; assert per <= 8
        sa = code_addr(k, f'tabs+{first * 1024}'); s1 = k.s(); ad = k.v(2)
        k(f'''s_mul_i32 s{s1}, s{sw}, {per * 1024}
        s_add_u32 s{sa}, s{sa}, s{s1}
        s_addc_u32 s{sa+1}, s{sa+1}, 0
        s_add_u32 m0, s{s1}, {ldsoff}
        v_lshl_add_u64 {V(ad,2)}, {V(l16,2)}, 0, {S(sa,2)}''')
        for i in range(per):
            if i == 4: k(f'v_add_co_u32 v{ad}, vcc, 4096, v{ad}\nv_addc_co_u32 v{ad+1}, vcc, 0, v{ad+1}, vcc\ns_add_u32 m0, m0, 4096')
            k(f'global_load_lds_dwordx4 {V(ad,2)}, off offset:{1024 * (i % 4)}')
        self.count = per; self.bytes = per * nw * 1024

def row_stats(k, pairs, extra, c, acc, tmp, wide):
    pass
```

```python
from asmgen import *
import layout as LY
ARG = dict(x=0, wr=8, wi=16, wg=32, wu=40, wd=48, c=56, wmod=64, out=72, dbg=80, ws=88)
STAMPS = False
OPT = {}

def begin(k, idx, ptrs):
    k.idx = idx
    if STAMPS:
        k.st0 = k.s(2); k(f's_memrealtime {S(k.st0,2)}')
        if k.name != 'k4_kernel': k.st2 = k.s(2); k.st_srd = k.s(4); k.st_tmp = k.s(1)
        if 'ws' not in ptrs: ptrs = ptrs + ['ws']
        if OPT.get('dbg'): ptrs = ptrs + ['dbg']
    k(f's_cmp_ge_u32 s2, {getattr(k, "nwg", k.grid)}\ns_cbranch_scc1 {k.L("end")}')
    P = {}
    for p in ptrs:
        P[p] = k.s(2); k(f's_load_dwordx2 {S(P[p],2)}, s[0:1], {ARG[p]}')
    k.P = P
    return P

def stamp_mid(k):
    if STAMPS:
        if not hasattr(k, 'st1'): k.st1 = k.s(2)
        k(f's_memrealtime {S(k.st1,2)}')

def mark(k):
    if not STAMPS or OPT.get('mkk', 'k4_kernel') != k.name: return
    if not hasattr(k, 'mkv'): k.mkv = k.v(); k.mks = k.s(4); k.nmk = 0
    a = k.mks; i = k.nmk; k.nmk += 1
    k(f's_memtime {S(a,2)}\ns_memrealtime {S(a+2,2)}\ns_waitcnt lgkmcnt(0)\nv_writelane_b32 v{k.mkv}, s{a}, {2*i}\nv_writelane_b32 v{k.mkv}, s{a+2}, {2*i+1}')

def mark_loop(k, cnt, vals):
    if not STAMPS: return
    if not hasattr(k, 'mtmp'): k.mtmp = k.s(4)
    a = k.mtmp
    k(f's_memtime {S(a,2)}\ns_memrealtime {S(a+2,2)}\ns_waitcnt lgkmcnt(0)')
    for v in vals:
        x = k.s(); y = k.s(); k.marks.append((x, y))
        k(f's_cmp_eq_u32 s{cnt}, {v}\ns_cselect_b32 s{x}, s{a}, s{x}\ns_cselect_b32 s{y}, s{a+2}, s{y}')

def finish(k, last=True):
    if STAMPS:
        if not hasattr(k, 'st2'):
            k.st2 = k.s(2); k.st_srd = k.s(4); k.st_tmp = k.s(1)
        if not hasattr(k, 'st1'): k.st1 = k.st0
        au = k.auto; k.auto = True
        k(f's_waitcnt vmcnt(0) lgkmcnt(0)\ns_memrealtime {S(k.st2,2)}\ns_mov_b64 exec, -1')
        k.srd(k.P["ws"], 0x20000, LY.STAMP, d=k.st_srd)
        k(f'''s_lshl_b32 s{k.st_tmp}, s2, 4
        s_add_u32 s{k.st_tmp}, s{k.st_tmp}, {k.idx * 10240}
        v_mov_b32 v4, s{k.st0}
        v_mov_b32 v5, s{k.st1}
        v_mov_b32 v6, s{k.st2}
        v_mov_b32 v7, 0
        v_mov_b32 v8, s{k.st_tmp}
        buffer_store_dwordx4 v[4:7], v8, {S(k.st_srd,4)}, 0 offen''')
        if OPT.get('dbg'):
            k.srd(k.P['dbg'], 256, -512 * k.idx, d=k.st_srd)
            k(f'''s_cmp_eq_u32 s2, {OPT['dbg']}
            s_cselect_b32 s{k.st_tmp}, {16 * k.idx}, 0x40000000
            v_mov_b32 v8, 0
            buffer_store_dwordx4 v[4:7], v8, {S(k.st_srd,4)}, s{k.st_tmp} offen''')
        elif hasattr(k, 'mkv'):
            k(f'''s_lshl_b32 s{k.st_tmp}, s2, 8
            s_add_u32 s{k.st_tmp}, s{k.st_tmp}, {0x10000}
            v_mbcnt_lo_u32_b32 v12, -1, 0
            v_mbcnt_hi_u32_b32 v12, -1, v12
            v_lshlrev_b32 v12, 2, v12
            s_mov_b32 exec_lo, {((1 << (2 * k.nmk)) - 1) & 0xffffffff}
            s_mov_b32 exec_hi, {((1 << (2 * k.nmk)) - 1) >> 32}
            buffer_store_dword v{k.mkv}, v12, {S(k.st_srd,4)}, s{k.st_tmp} offen''')
        k.auto = au
    if last: k(f'{k.L("end")}:')
    k('s_endpgm')

_pc = [0]
def code_addr(k, expr, back=False):
    a = k.s(2); _pc[0] += 1; lab = k.L(f'pc{_pc[0]}')
    if back: k(f's_getpc_b64 {S(a,2)}\n{lab}:\ns_sub_u32 s{a}, s{a}, {lab}-{expr}\ns_subb_u32 s{a+1}, s{a+1}, 0')
    else: k(f's_getpc_b64 {S(a,2)}\n{lab}:\ns_add_u32 s{a}, s{a}, {expr}-{lab}\ns_addc_u32 s{a+1}, s{a+1}, 0')
    return a

class Tabs:
    def __init__(self, k, lane16, first, soff=None):
        self.k = k; self.lane16 = lane16; self.first = first; self.bases = {}
        self.sa = code_addr(k, f'tabs+{(first + 4) * 1024}')
        if soff is not None: k(f's_add_u32 s{self.sa}, s{self.sa}, s{soff}\ns_addc_u32 s{self.sa+1}, s{self.sa+1}, 0')
        self.cur = 0
    def load(self, dst, fr):
        k = self.k; rel = fr - self.first; grp = rel // 8
        if grp not in self.bases:
            while self.cur < grp:
                k(f's_add_u32 s{self.sa}, s{self.sa}, 8192\ns_addc_u32 s{self.sa+1}, s{self.sa+1}, 0'); self.cur += 1
            assert self.cur == grp
            b = k.v(2); self.bases[grp] = b
            k(f'v_lshl_add_u64 {V(b,2)}, {V(self.lane16,2)}, 0, {S(self.sa,2)}')
        k(f'global_load_dwordx4 {dst}, {V(self.bases[grp],2)}, off offset:{(rel % 8) * 1024 - 4096}')

def wave_id(k, dst_s, tmp_v):
    k(f'v_lshrrev_b32 v{tmp_v}, 6, v0\nv_readfirstlane_b32 s{dst_s}, v{tmp_v}')

def red16(k, regs, tmp=None):
    for pat in ('quad_perm:[1,0,3,2]', 'quad_perm:[2,3,0,1]', 'row_half_mirror', 'row_mirror'):
        for r in regs: k(f'v_add_f32_dpp v{r}, v{r}, v{r} {pat} row_mask:0xf bank_mask:0xf')
def red_swap(k, regs, tmps, which):
    for r, t in zip(regs, tmps): k(f'v_mov_b32 v{t}, v{r}')
    for r, t in zip(regs, tmps): k(f'v_permlane{which}_swap_b32 v{r}, v{t}')
    for r, t in zip(regs, tmps): k(f'v_add_f32 v{r}, v{r}, v{t}')

PF = dict(k2=(0, 0), k3=(0, 72), k4a=(72, 200), k4b=(200, 243))
def weight_prefetch(k, key, sw, wpw, lane, defer=False, tag='', ybase=0):
    lo, hi = OPT.get('pf_' + key, PF[key])
    if hi <= lo: return None
    P = k.P; a = k.s(); d = k.s(4); t = k.v()
    ns0 = k.ns; I = k.s(); g = k.s(); b = k.s()
    wd = k.L('pfwd' + key + tag); go = k.L('pfgo' + key + tag)
    k(f'''s_lshr_b32 s{I}, s2, 3
    s_sub_u32 s{I}, s{I}, {ybase}
    s_cmp_ge_u32 s{I}, {32 if wpw == 4 else wpw}
    s_cselect_b32 s{I}, 999, s{I}
    s_mul_i32 s{g}, s{sw}, {32 if wpw == 4 else wpw}
    s_add_u32 s{I}, s{I}, s{g}
    s_add_u32 s{I}, s{I}, {lo}
    s_cmp_ge_u32 s{I}, {hi}
    s_cselect_b32 s{d+2}, 0, {576*4608*2}
    s_and_b32 s{a}, s2, 7
    s_mov_b32 s{d+3}, 0x20000
    s_cmp_ge_u32 s{I}, 162
    s_cbranch_scc1 {wd}
    s_mul_i32 s{g}, s{I}, 7282
    s_lshr_b32 s{g}, s{g}, 16
    s_mul_i32 s{b}, s{g}, 9
    s_sub_u32 s{I}, s{I}, s{b}
    s_mul_i32 s{I}, s{I}, {64*9216}
    v_mul_u32_u24 v{t}, 9216, v{lane}
    s_mul_i32 s{a}, s{a}, 1152
    s_add_u32 s{a}, s{a}, s{I}
    s_lshr_b32 s{b}, s{g}, 2
    s_lshl_b32 s{b}, s{b}, 7
    s_add_u32 s{a}, s{a}, s{b}
    s_bfe_u32 s{b}, s{g}, 0x10001
    s_mul_i32 s{b}, s{b}, 640
    s_add_u32 s{a}, s{a}, s{b}
    s_bitcmp1_b32 s{g}, 0
    s_cselect_b32 s{d}, s{P['wu']}, s{P['wg']}
    s_cselect_b32 s{d+1}, s{P['wu']+1}, s{P['wg']+1}
    s_branch {go}
    {wd}:
    s_sub_u32 s{I}, s{I}, 162
    s_lshl_b32 s{I}, s{I}, 13
    s_mul_i32 s{a}, s{a}, {576*1152}
    s_add_u32 s{a}, s{a}, s{I}
    v_lshlrev_b32 v{t}, 7, v{lane}
    s_mov_b32 s{d}, s{P['wd']}
    s_mov_b32 s{d+1}, s{P['wd']+1}
    {go}:''')
    k.ns = ns0
    ld = f'buffer_load_dword v{t}, v{t}, {S(d,4)}, s{a} offen'
    if defer: return t, d, a
    k(ld)

def STAMPS_ON(): return STAMPS

class TabDMA:
    def __init__(self, k, l16, sw, first, n, ldsoff, nw=4):
        per = (n + nw - 1) // nw; assert per <= 8
        sa = code_addr(k, f'tabs+{first * 1024}'); s1 = k.s(); ad = k.v(2)
        k(f'''s_mul_i32 s{s1}, s{sw}, {per * 1024}
        s_add_u32 s{sa}, s{sa}, s{s1}
        s_addc_u32 s{sa+1}, s{sa+1}, 0
        s_add_u32 m0, s{s1}, {ldsoff}
        v_lshl_add_u64 {V(ad,2)}, {V(l16,2)}, 0, {S(sa,2)}''')
        for i in range(per):
            if i == 4: k(f'v_add_co_u32 v{ad}, vcc, 4096, v{ad}\nv_addc_co_u32 v{ad+1}, vcc, 0, v{ad+1}, vcc\ns_add_u32 m0, m0, 4096')
            k(f'global_load_lds_dwordx4 {V(ad,2)}, off offset:{1024 * (i % 4)}')
        self.count = per; self.bytes = per * nw * 1024

def row_stats(k, pairs, extra, c, acc, tmp, wide):
    pass
```

```python
from asmgen import *
import layout as LY
ARG = dict(x=0, wr=8, wi=16, wg=32, wu=40, wd=48, c=56, wmod=64, out=72, dbg=80, ws=88)
STAMPS = False
OPT = {}

def begin(k, idx, ptrs):
    k.idx = idx
    if STAMPS:
        k.st0 = k.s(2); k(f's_memrealtime {S(k.st0,2)}')
        if k.name != 'k4_kernel': k.st2 = k.s(2); k.st_srd = k.s(4); k.st_tmp = k.s(1)
        if 'ws' not in ptrs: ptrs = ptrs + ['ws']
        if OPT.get('dbg'): ptrs = ptrs + ['dbg']
    k(f's_cmp_ge_u32 s2, {getattr(k, "nwg", k.grid)}\ns_cbranch_scc1 {k.L("end")}')
    P = {}
    for p in ptrs:
        P[p] = k.s(2); k(f's_load_dwordx2 {S(P[p],2)}, s[0:1], {ARG[p]}')
    k.P = P
    return P

def stamp_mid(k):
    if STAMPS:
        if not hasattr(k, 'st1'): k.st1 = k.s(2)
        k(f's_memrealtime {S(k.st1,2)}')

def mark(k):
    if not STAMPS or OPT.get('mkk', 'k4_kernel') != k.name: return
    if not hasattr(k, 'mkv'): k.mkv = k.v(); k.mks = k.s(4); k.nmk = 0
    a = k.mks; i = k.nmk; k.nmk += 1
    k(f's_memtime {S(a,2)}\ns_memrealtime {S(a+2,2)}\ns_waitcnt lgkmcnt(0)\nv_writelane_b32 v{k.mkv}, s{a}, {2*i}\nv_writelane_b32 v{k.mkv}, s{a+2}, {2*i+1}')

def mark_loop(k, cnt, vals):
    if not STAMPS: return
    if not hasattr(k, 'mtmp'): k.mtmp = k.s(4)
    a = k.mtmp
    k(f's_memtime {S(a,2)}\ns_memrealtime {S(a+2,2)}\ns_waitcnt lgkmcnt(0)')
    for v in vals:
        x = k.s(); y = k.s(); k.marks.append((x, y))
        k(f's_cmp_eq_u32 s{cnt}, {v}\ns_cselect_b32 s{x}, s{a}, s{x}\ns_cselect_b32 s{y}, s{a+2}, s{y}')

def finish(k, last=True):
    if STAMPS:
        if not hasattr(k, 'st2'):
            k.st2 = k.s(2); k.st_srd = k.s(4); k.st_tmp = k.s(1)
        if not hasattr(k, 'st1'): k.st1 = k.st0
        au = k.auto; k.auto = True
        k(f's_waitcnt vmcnt(0) lgkmcnt(0)\ns_memrealtime {S(k.st2,2)}\ns_mov_b64 exec, -1')
        k.srd(k.P["ws"], 0x20000, LY.STAMP, d=k.st_srd)
        k(f'''s_lshl_b32 s{k.st_tmp}, s2, 4
        s_add_u32 s{k.st_tmp}, s{k.st_tmp}, {k.idx * 10240}
        v_mov_b32 v4, s{k.st0}
        v_mov_b32 v5, s{k.st1}
        v_mov_b32 v6, s{k.st2}
        v_mov_b32 v7, 0
        v_mov_b32 v8, s{k.st_tmp}
        buffer_store_dwordx4 v[4:7], v8, {S(k.st_srd,4)}, 0 offen''')
        if OPT.get('dbg') and k.idx == 3:
            k(f'''s_waitcnt vmcnt(0)
            v_mbcnt_lo_u32_b32 v12, -1, 0
            v_and_b32 v12, 15, v12
            v_lshrrev_b32 v13, 2, v12
            v_mul_u32_u24 v13, 10240, v13
            v_and_b32 v14, 3, v12
            v_lshl_add_u32 v13, v14, 2, v13
            s_mov_b32 s{k.st_tmp}, {16 * OPT['dbg']}
            buffer_load_dword v15, v13, {S(k.st_srd,4)}, s{k.st_tmp} offen sc1
            v_lshlrev_b32 v12, 2, v12''')
            k.srd(k.P['dbg'], 256, d=k.st_srd)
            k(f'''s_cmp_eq_u32 s2, {OPT['dbg']}
            s_cselect_b32 s{k.st_tmp}, 0, 0x40000000
            buffer_store_dword v15, v12, {S(k.st_srd,4)}, s{k.st_tmp} offen''')
        elif hasattr(k, 'mkv'):
            k(f'''s_lshl_b32 s{k.st_tmp}, s2, 8
            s_add_u32 s{k.st_tmp}, s{k.st_tmp}, {0x10000}
            v_mbcnt_lo_u32_b32 v12, -1, 0
            v_mbcnt_hi_u32_b32 v12, -1, v12
            v_lshlrev_b32 v12, 2, v12
            s_mov_b32 exec_lo, {((1 << (2 * k.nmk)) - 1) & 0xffffffff}
            s_mov_b32 exec_hi, {((1 << (2 * k.nmk)) - 1) >> 32}
            buffer_store_dword v{k.mkv}, v12, {S(k.st_srd,4)}, s{k.st_tmp} offen''')
        k.auto = au
    if last: k(f'{k.L("end")}:')
    k('s_endpgm')

_pc = [0]
def code_addr(k, expr, back=False):
    a = k.s(2); _pc[0] += 1; lab = k.L(f'pc{_pc[0]}')
    if back: k(f's_getpc_b64 {S(a,2)}\n{lab}:\ns_sub_u32 s{a}, s{a}, {lab}-{expr}\ns_subb_u32 s{a+1}, s{a+1}, 0')
    else: k(f's_getpc_b64 {S(a,2)}\n{lab}:\ns_add_u32 s{a}, s{a}, {expr}-{lab}\ns_addc_u32 s{a+1}, s{a+1}, 0')
    return a

class Tabs:
    def __init__(self, k, lane16, first, soff=None):
        self.k = k; self.lane16 = lane16; self.first = first; self.bases = {}
        self.sa = code_addr(k, f'tabs+{(first + 4) * 1024}')
        if soff is not None: k(f's_add_u32 s{self.sa}, s{self.sa}, s{soff}\ns_addc_u32 s{self.sa+1}, s{self.sa+1}, 0')
        self.cur = 0
    def load(self, dst, fr):
        k = self.k; rel = fr - self.first; grp = rel // 8
        if grp not in self.bases:
            while self.cur < grp:
                k(f's_add_u32 s{self.sa}, s{self.sa}, 8192\ns_addc_u32 s{self.sa+1}, s{self.sa+1}, 0'); self.cur += 1
            assert self.cur == grp
            b = k.v(2); self.bases[grp] = b
            k(f'v_lshl_add_u64 {V(b,2)}, {V(self.lane16,2)}, 0, {S(self.sa,2)}')
        k(f'global_load_dwordx4 {dst}, {V(self.bases[grp],2)}, off offset:{(rel % 8) * 1024 - 4096}')

def wave_id(k, dst_s, tmp_v):
    k(f'v_lshrrev_b32 v{tmp_v}, 6, v0\nv_readfirstlane_b32 s{dst_s}, v{tmp_v}')

def red16(k, regs, tmp=None):
    for pat in ('quad_perm:[1,0,3,2]', 'quad_perm:[2,3,0,1]', 'row_half_mirror', 'row_mirror'):
        for r in regs: k(f'v_add_f32_dpp v{r}, v{r}, v{r} {pat} row_mask:0xf bank_mask:0xf')
def red_swap(k, regs, tmps, which):
    for r, t in zip(regs, tmps): k(f'v_mov_b32 v{t}, v{r}')
    for r, t in zip(regs, tmps): k(f'v_permlane{which}_swap_b32 v{r}, v{t}')
    for r, t in zip(regs, tmps): k(f'v_add_f32 v{r}, v{r}, v{t}')

PF = dict(k2=(0, 0), k3=(0, 72), k4a=(72, 200), k4b=(200, 243))
def weight_prefetch(k, key, sw, wpw, lane, defer=False, tag='', ybase=0):
    lo, hi = OPT.get('pf_' + key, PF[key])
    if hi <= lo: return None
    P = k.P; a = k.s(); d = k.s(4); t = k.v()
    ns0 = k.ns; I = k.s(); g = k.s(); b = k.s()
    wd = k.L('pfwd' + key + tag); go = k.L('pfgo' + key + tag)
    k(f'''s_lshr_b32 s{I}, s2, 3
    s_sub_u32 s{I}, s{I}, {ybase}
    s_cmp_ge_u32 s{I}, {32 if wpw == 4 else wpw}
    s_cselect_b32 s{I}, 999, s{I}
    s_mul_i32 s{g}, s{sw}, {32 if wpw == 4 else wpw}
    s_add_u32 s{I}, s{I}, s{g}
    s_add_u32 s{I}, s{I}, {lo}
    s_cmp_ge_u32 s{I}, {hi}
    s_cselect_b32 s{d+2}, 0, {576*4608*2}
    s_and_b32 s{a}, s2, 7
    s_mov_b32 s{d+3}, 0x20000
    s_cmp_ge_u32 s{I}, 162
    s_cbranch_scc1 {wd}
    s_mul_i32 s{g}, s{I}, 7282
    s_lshr_b32 s{g}, s{g}, 16
    s_mul_i32 s{b}, s{g}, 9
    s_sub_u32 s{I}, s{I}, s{b}
    s_mul_i32 s{I}, s{I}, {64*9216}
    v_mul_u32_u24 v{t}, 9216, v{lane}
    s_mul_i32 s{a}, s{a}, 1152
    s_add_u32 s{a}, s{a}, s{I}
    s_lshr_b32 s{b}, s{g}, 2
    s_lshl_b32 s{b}, s{b}, 7
    s_add_u32 s{a}, s{a}, s{b}
    s_bfe_u32 s{b}, s{g}, 0x10001
    s_mul_i32 s{b}, s{b}, 640
    s_add_u32 s{a}, s{a}, s{b}
    s_bitcmp1_b32 s{g}, 0
    s_cselect_b32 s{d}, s{P['wu']}, s{P['wg']}
    s_cselect_b32 s{d+1}, s{P['wu']+1}, s{P['wg']+1}
    s_branch {go}
    {wd}:
    s_sub_u32 s{I}, s{I}, 162
    s_lshl_b32 s{I}, s{I}, 13
    s_mul_i32 s{a}, s{a}, {576*1152}
    s_add_u32 s{a}, s{a}, s{I}
    v_lshlrev_b32 v{t}, 7, v{lane}
    s_mov_b32 s{d}, s{P['wd']}
    s_mov_b32 s{d+1}, s{P['wd']+1}
    {go}:''')
    k.ns = ns0
    ld = f'buffer_load_dword v{t}, v{t}, {S(d,4)}, s{a} offen'
    if defer: return t, d, a
    k(ld)

def STAMPS_ON(): return STAMPS

class TabDMA:
    def __init__(self, k, l16, sw, first, n, ldsoff, nw=4):
        per = (n + nw - 1) // nw; assert per <= 8
        sa = code_addr(k, f'tabs+{first * 1024}'); s1 = k.s(); ad = k.v(2)
        k(f'''s_mul_i32 s{s1}, s{sw}, {per * 1024}
        s_add_u32 s{sa}, s{sa}, s{s1}
        s_addc_u32 s{sa+1}, s{sa+1}, 0
        s_add_u32 m0, s{s1}, {ldsoff}
        v_lshl_add_u64 {V(ad,2)}, {V(l16,2)}, 0, {S(sa,2)}''')
        for i in range(per):
            if i == 4: k(f'v_add_co_u32 v{ad}, vcc, 4096, v{ad}\nv_addc_co_u32 v{ad+1}, vcc, 0, v{ad+1}, vcc\ns_add_u32 m0, m0, 4096')
            k(f'global_load_lds_dwordx4 {V(ad,2)}, off offset:{1024 * (i % 4)}')
        self.count = per; self.bytes = per * nw * 1024

def row_stats(k, pairs, extra, c, acc, tmp, wide):
    pass
```

```python
from asmgen import *
import layout as LY
ARG = dict(x=0, wr=8, wi=16, wg=32, wu=40, wd=48, c=56, wmod=64, out=72, dbg=80, ws=88)
STAMPS = False
OPT = {}
IDX = {}

def begin(k, idx, ptrs):
    k.idx = idx
    if STAMPS:
        k.st0 = k.s(2); k(f's_memrealtime {S(k.st0,2)}')
        if k.name != 'k4_kernel': k.st2 = k.s(2); k.st_srd = k.s(4); k.st_tmp = k.s(1)
        if 'ws' not in ptrs: ptrs = ptrs + ['ws']
        if OPT.get('dbg'): ptrs = ptrs + ['dbg']
    k(f's_cmp_ge_u32 s2, {getattr(k, "nwg", k.grid)}\ns_cbranch_scc1 {k.L("end")}')
    P = {}
    for p in ptrs:
        P[p] = k.s(2); k(f's_load_dwordx2 {S(P[p],2)}, s[0:1], {ARG[p]}')
    k.P = P
    return P

def stamp_mid(k):
    if STAMPS:
        if not hasattr(k, 'st1'): k.st1 = k.s(2)
        k(f's_memrealtime {S(k.st1,2)}')

def mark(k):
    if not STAMPS or OPT.get('mkk', 'k4_kernel') != k.name: return
    if not hasattr(k, 'mkv'): k.mkv = k.v(); k.mks = k.s(4); k.nmk = 0
    a = k.mks; i = k.nmk; k.nmk += 1
    k(f's_memtime {S(a,2)}\ns_memrealtime {S(a+2,2)}\ns_waitcnt lgkmcnt(0)\nv_writelane_b32 v{k.mkv}, s{a}, {2*i}\nv_writelane_b32 v{k.mkv}, s{a+2}, {2*i+1}')

def mark_loop(k, cnt, vals):
    if not STAMPS: return
    if not hasattr(k, 'mtmp'): k.mtmp = k.s(4)
    a = k.mtmp
    k(f's_memtime {S(a,2)}\ns_memrealtime {S(a+2,2)}\ns_waitcnt lgkmcnt(0)')
    for v in vals:
        x = k.s(); y = k.s(); k.marks.append((x, y))
        k(f's_cmp_eq_u32 s{cnt}, {v}\ns_cselect_b32 s{x}, s{a}, s{x}\ns_cselect_b32 s{y}, s{a+2}, s{y}')

def finish(k, last=True):
    if STAMPS:
        if not hasattr(k, 'st2'):
            k.st2 = k.s(2); k.st_srd = k.s(4); k.st_tmp = k.s(1)
        if not hasattr(k, 'st1'): k.st1 = k.st0
        au = k.auto; k.auto = True
        k(f's_waitcnt vmcnt(0) lgkmcnt(0)\ns_memrealtime {S(k.st2,2)}\ns_mov_b64 exec, -1')
        k.srd(k.P["ws"], 0x20000, LY.STAMP, d=k.st_srd)
        k(f'''s_lshl_b32 s{k.st_tmp}, s2, 4
        s_add_u32 s{k.st_tmp}, s{k.st_tmp}, {k.idx * 10240}
        v_mov_b32 v4, s{k.st0}
        v_mov_b32 v5, s{k.st1}
        v_mov_b32 v6, s{k.st2}
        v_mov_b32 v7, 0
        v_mov_b32 v8, s{k.st_tmp}
        buffer_store_dwordx4 v[4:7], v8, {S(k.st_srd,4)}, 0 offen''')
        if OPT.get('dbg') and k.idx == 3:
            k(f'''s_waitcnt vmcnt(0)
            v_mbcnt_lo_u32_b32 v12, -1, 0
            v_and_b32 v12, 15, v12
            v_lshrrev_b32 v13, 2, v12
            v_mul_u32_u24 v13, 10240, v13
            v_and_b32 v14, 3, v12
            v_lshl_add_u32 v13, v14, 2, v13
            s_mov_b32 s{k.st_tmp}, {16 * OPT['dbg']}
            buffer_load_dword v15, v13, {S(k.st_srd,4)}, s{k.st_tmp} offen sc1
            v_lshlrev_b32 v12, 2, v12''')
            k.srd(k.P['dbg'], 256, d=k.st_srd)
            k(f'''s_cmp_eq_u32 s2, {OPT['dbg']}
            s_cselect_b32 s{k.st_tmp}, 0, 0x40000000
            buffer_store_dword v15, v12, {S(k.st_srd,4)}, s{k.st_tmp} offen''')
        elif hasattr(k, 'mkv'):
            k(f'''s_and_b32 s{k.st_tmp}, s2, 255
            s_lshl_b32 s{k.st_tmp}, s{k.st_tmp}, 8
            s_add_u32 s{k.st_tmp}, s{k.st_tmp}, {0x10000}
            v_mbcnt_lo_u32_b32 v12, -1, 0
            v_mbcnt_hi_u32_b32 v12, -1, v12
            v_lshlrev_b32 v12, 2, v12
            s_mov_b32 exec_lo, {((1 << (2 * k.nmk)) - 1) & 0xffffffff}
            s_mov_b32 exec_hi, {((1 << (2 * k.nmk)) - 1) >> 32}
            buffer_store_dword v{k.mkv}, v12, {S(k.st_srd,4)}, s{k.st_tmp} offen''')
        k.auto = au
    if last: k(f'{k.L("end")}:')
    k('s_endpgm')

_pc = [0]
def code_addr(k, expr, back=False):
    a = k.s(2); _pc[0] += 1; lab = k.L(f'pc{_pc[0]}')
    if back: k(f's_getpc_b64 {S(a,2)}\n{lab}:\ns_sub_u32 s{a}, s{a}, {lab}-{expr}\ns_subb_u32 s{a+1}, s{a+1}, 0')
    else: k(f's_getpc_b64 {S(a,2)}\n{lab}:\ns_add_u32 s{a}, s{a}, {expr}-{lab}\ns_addc_u32 s{a+1}, s{a+1}, 0')
    return a

class Tabs:
    def __init__(self, k, lane16, first, soff=None):
        self.k = k; self.lane16 = lane16; self.first = first; self.bases = {}
        self.sa = code_addr(k, f'tabs+{(first + 4) * 1024}')
        if soff is not None: k(f's_add_u32 s{self.sa}, s{self.sa}, s{soff}\ns_addc_u32 s{self.sa+1}, s{self.sa+1}, 0')
        self.cur = 0
    def load(self, dst, fr):
        k = self.k; rel = fr - self.first; grp = rel // 8
        if grp not in self.bases:
            while self.cur < grp:
                k(f's_add_u32 s{self.sa}, s{self.sa}, 8192\ns_addc_u32 s{self.sa+1}, s{self.sa+1}, 0'); self.cur += 1
            assert self.cur == grp
            b = k.v(2); self.bases[grp] = b
            k(f'v_lshl_add_u64 {V(b,2)}, {V(self.lane16,2)}, 0, {S(self.sa,2)}')
        k(f'global_load_dwordx4 {dst}, {V(self.bases[grp],2)}, off offset:{(rel % 8) * 1024 - 4096}')

def wave_id(k, dst_s, tmp_v):
    k(f'v_lshrrev_b32 v{tmp_v}, 6, v0\nv_readfirstlane_b32 s{dst_s}, v{tmp_v}')

def red16(k, regs, tmp=None):
    for pat in ('quad_perm:[1,0,3,2]', 'quad_perm:[2,3,0,1]', 'row_half_mirror', 'row_mirror'):
        for r in regs: k(f'v_add_f32_dpp v{r}, v{r}, v{r} {pat} row_mask:0xf bank_mask:0xf')
def red_swap(k, regs, tmps, which):
    for r, t in zip(regs, tmps): k(f'v_mov_b32 v{t}, v{r}')
    for r, t in zip(regs, tmps): k(f'v_permlane{which}_swap_b32 v{r}, v{t}')
    for r, t in zip(regs, tmps): k(f'v_add_f32 v{r}, v{r}, v{t}')

PF = dict(k1=(0, 0), k2=(0, 0), k3=(0, 128), k4a=(128, 243), k4=(243, 243))
def weight_prefetch(k, key, sw, wpw, lane, defer=False, tag='', ybase=0):
    lo, hi = OPT.get('pf_' + key, PF[key])
    if hi <= lo: return None
    P = k.P; a = k.s(); d = k.s(4); t = k.v()
    ns0 = k.ns; I = k.s(); g = k.s(); b = k.s()
    wd = k.L('pfwd' + key + tag); go = k.L('pfgo' + key + tag)
    k(f'''s_lshr_b32 s{I}, s2, 3
    s_sub_u32 s{I}, s{I}, {ybase}
    s_cmp_ge_u32 s{I}, {32 if wpw == 4 else wpw}
    s_cselect_b32 s{I}, 999, s{I}
    s_mul_i32 s{g}, s{sw}, {32 if wpw == 4 else wpw}
    s_add_u32 s{I}, s{I}, s{g}
    s_add_u32 s{I}, s{I}, {lo}
    s_cmp_ge_u32 s{I}, {hi}
    s_cselect_b32 s{d+2}, 0, {576*4608*2}
    s_and_b32 s{a}, s2, 7
    s_mov_b32 s{d+3}, 0x20000
    s_cmp_ge_u32 s{I}, 162
    s_cbranch_scc1 {wd}
    s_mul_i32 s{g}, s{I}, 7282
    s_lshr_b32 s{g}, s{g}, 16
    s_mul_i32 s{b}, s{g}, 9
    s_sub_u32 s{b}, s{I}, s{b}
    s_cmp_lt_u32 s{I}, 72
    s_cbranch_scc0 {go}x
    s_and_b32 s{g}, s{I}, 7
    s_lshr_b32 s{b}, s{I}, 3
    {go}x:
    s_mov_b32 s{I}, s{b}
    s_mul_i32 s{I}, s{I}, {64*9216}
    v_mul_u32_u24 v{t}, 9216, v{lane}
    s_mul_i32 s{a}, s{a}, 1152
    s_add_u32 s{a}, s{a}, s{I}
    s_lshr_b32 s{b}, s{g}, 2
    s_lshl_b32 s{b}, s{b}, 7
    s_add_u32 s{a}, s{a}, s{b}
    s_bfe_u32 s{b}, s{g}, 0x10001
    s_mul_i32 s{b}, s{b}, 640
    s_add_u32 s{a}, s{a}, s{b}
    s_bitcmp1_b32 s{g}, 0
    s_cselect_b32 s{d}, s{P['wu']}, s{P['wg']}
    s_cselect_b32 s{d+1}, s{P['wu']+1}, s{P['wg']+1}
    s_branch {go}
    {wd}:
    s_sub_u32 s{I}, s{I}, 162
    s_lshl_b32 s{I}, s{I}, 13
    s_mul_i32 s{a}, s{a}, {576*1152}
    s_add_u32 s{a}, s{a}, s{I}
    v_lshlrev_b32 v{t}, 7, v{lane}
    s_mov_b32 s{d}, s{P['wd']}
    s_mov_b32 s{d+1}, s{P['wd']+1}
    {go}:''')
    k.ns = ns0
    ld = f'buffer_load_dword v{t}, v{t}, {S(d,4)}, s{a} offen'
    if defer: return t, d, a
    k(ld)

def STAMPS_ON(): return STAMPS

class TabDMA:
    def __init__(self, k, l16, sw, first, n, ldsoff, nw=4):
        per = (n + nw - 1) // nw; assert per <= 8
        sa = code_addr(k, f'tabs+{first * 1024}'); s1 = k.s(); ad = k.v(2)
        k(f'''s_mul_i32 s{s1}, s{sw}, {per * 1024}
        s_add_u32 s{sa}, s{sa}, s{s1}
        s_addc_u32 s{sa+1}, s{sa+1}, 0
        s_add_u32 m0, s{s1}, {ldsoff}
        v_lshl_add_u64 {V(ad,2)}, {V(l16,2)}, 0, {S(sa,2)}''')
        for i in range(per):
            if i == 4: k(f'v_add_co_u32 v{ad}, vcc, 4096, v{ad}\nv_addc_co_u32 v{ad+1}, vcc, 0, v{ad+1}, vcc\ns_add_u32 m0, m0, 4096')
            k(f'global_load_lds_dwordx4 {V(ad,2)}, off offset:{1024 * (i % 4)}')
        self.count = per; self.bytes = per * nw * 1024

def row_stats(k, pairs, extra, c, acc, tmp, wide):
    pass
```

```python
from asmgen import *
import layout as LY
ARG = dict(x=0, wr=8, wi=16, wg=32, wu=40, wd=48, c=56, wmod=64, out=72, dbg=80, ws=88)
STAMPS = False
OPT = {}
IDX = {}

def begin(k, idx, ptrs):
    k.idx = idx
    if STAMPS:
        k.st0 = k.s(2); k(f's_memrealtime {S(k.st0,2)}')
        if k.name != 'k4_kernel': k.st2 = k.s(2); k.st_srd = k.s(4); k.st_tmp = k.s(1)
        if 'ws' not in ptrs: ptrs = ptrs + ['ws']
        if OPT.get('dbg'): ptrs = ptrs + ['dbg']
    k(f's_cmp_ge_u32 s2, {getattr(k, "nwg", k.grid)}\ns_cbranch_scc1 {k.L("end")}')
    P = {}
    for p in ptrs:
        P[p] = k.s(2); k(f's_load_dwordx2 {S(P[p],2)}, s[0:1], {ARG[p]}')
    k.P = P
    return P

def stamp_mid(k):
    if STAMPS:
        if not hasattr(k, 'st1'): k.st1 = k.s(2)
        k(f's_memrealtime {S(k.st1,2)}')

def mark(k):
    if not STAMPS or OPT.get('mkk', 'k4_kernel') != k.name: return
    if not hasattr(k, 'mkv'): k.mkv = k.v(); k.mks = k.s(4); k.nmk = 0
    a = k.mks; i = k.nmk; k.nmk += 1
    k(f's_memtime {S(a,2)}\ns_memrealtime {S(a+2,2)}\ns_waitcnt lgkmcnt(0)\nv_writelane_b32 v{k.mkv}, s{a}, {2*i}\nv_writelane_b32 v{k.mkv}, s{a+2}, {2*i+1}')

def mark_loop(k, cnt, vals):
    if not STAMPS: return
    if not hasattr(k, 'mtmp'): k.mtmp = k.s(4)
    a = k.mtmp
    k(f's_memtime {S(a,2)}\ns_memrealtime {S(a+2,2)}\ns_waitcnt lgkmcnt(0)')
    for v in vals:
        x = k.s(); y = k.s(); k.marks.append((x, y))
        k(f's_cmp_eq_u32 s{cnt}, {v}\ns_cselect_b32 s{x}, s{a}, s{x}\ns_cselect_b32 s{y}, s{a+2}, s{y}')

def finish(k, last=True):
    if STAMPS:
        if not hasattr(k, 'st2'):
            k.st2 = k.s(2); k.st_srd = k.s(4); k.st_tmp = k.s(1)
        if not hasattr(k, 'st1'): k.st1 = k.st0
        au = k.auto; k.auto = True
        k(f's_waitcnt vmcnt(0) lgkmcnt(0)\ns_memrealtime {S(k.st2,2)}\ns_mov_b64 exec, -1')
        k.srd(k.P["ws"], 0x20000, LY.STAMP, d=k.st_srd)
        k(f'''s_lshl_b32 s{k.st_tmp}, s2, 4
        s_add_u32 s{k.st_tmp}, s{k.st_tmp}, {k.idx * 10240}
        v_mov_b32 v4, s{k.st0}
        v_mov_b32 v5, s{k.st1}
        v_mov_b32 v6, s{k.st2}
        v_mov_b32 v7, 0
        v_mov_b32 v8, s{k.st_tmp}
        buffer_store_dwordx4 v[4:7], v8, {S(k.st_srd,4)}, 0 offen''')
        if OPT.get('amp') and k.name == 'k4_kernel':
            (ia, ja), (ib, jb), K_ = OPT['amp']; wg = 140
            k(f'''s_waitcnt vmcnt(0)
            s_barrier
            v_mov_b32 v12, {ia * 10240 + wg * 16 + 4 * ja}
            v_mov_b32 v13, {ib * 10240 + wg * 16 + 4 * jb}
            s_cmp_lg_u32 s2, {wg}
            s_cbranch_scc1 {k.L("ampx")}
            buffer_load_dword v14, v12, {S(k.st_srd,4)}, 0 offen sc1
            buffer_load_dword v15, v13, {S(k.st_srd,4)}, 0 offen sc1
            s_waitcnt vmcnt(0)
            v_sub_u32 v14, v15, v14
            v_readfirstlane_b32 s{k.st_tmp}, v14
            s_min_u32 s{k.st_tmp}, s{k.st_tmp}, 5000
            s_mul_i32 s{k.st_tmp}, s{k.st_tmp}, {K_}
            {k.L("amp")}:
            s_memrealtime {S(k.st0,2)}
            s_waitcnt lgkmcnt(0)
            s_sub_u32 s{k.st0}, s{k.st0}, s{k.st2}
            s_cmp_lt_u32 s{k.st0}, s{k.st_tmp}
            s_cbranch_scc1 {k.L("amp")}
            {k.L("ampx")}:''')
        if OPT.get('dbg') and k.idx == 3:
            k(f'''s_waitcnt vmcnt(0)
            v_mbcnt_lo_u32_b32 v12, -1, 0
            v_and_b32 v12, 15, v12
            v_lshrrev_b32 v13, 2, v12
            v_mul_u32_u24 v13, 10240, v13
            v_and_b32 v14, 3, v12
            v_lshl_add_u32 v13, v14, 2, v13
            s_mov_b32 s{k.st_tmp}, {16 * OPT['dbg']}
            buffer_load_dword v15, v13, {S(k.st_srd,4)}, s{k.st_tmp} offen sc1
            v_lshlrev_b32 v12, 2, v12''')
            k.srd(k.P['dbg'], 256, d=k.st_srd)
            k(f'''s_cmp_eq_u32 s2, {OPT['dbg']}
            s_cselect_b32 s{k.st_tmp}, 0, 0x40000000
            buffer_store_dword v15, v12, {S(k.st_srd,4)}, s{k.st_tmp} offen''')
        elif hasattr(k, 'mkv'):
            k(f'''s_and_b32 s{k.st_tmp}, s2, 255
            s_lshl_b32 s{k.st_tmp}, s{k.st_tmp}, 8
            s_add_u32 s{k.st_tmp}, s{k.st_tmp}, {0x10000}
            v_mbcnt_lo_u32_b32 v12, -1, 0
            v_mbcnt_hi_u32_b32 v12, -1, v12
            v_lshlrev_b32 v12, 2, v12
            s_mov_b32 exec_lo, {((1 << (2 * k.nmk)) - 1) & 0xffffffff}
            s_mov_b32 exec_hi, {((1 << (2 * k.nmk)) - 1) >> 32}
            buffer_store_dword v{k.mkv}, v12, {S(k.st_srd,4)}, s{k.st_tmp} offen''')
        k.auto = au
    if last: k(f'{k.L("end")}:')
    k('s_endpgm')

_pc = [0]
def code_addr(k, expr, back=False):
    a = k.s(2); _pc[0] += 1; lab = k.L(f'pc{_pc[0]}')
    if back: k(f's_getpc_b64 {S(a,2)}\n{lab}:\ns_sub_u32 s{a}, s{a}, {lab}-{expr}\ns_subb_u32 s{a+1}, s{a+1}, 0')
    else: k(f's_getpc_b64 {S(a,2)}\n{lab}:\ns_add_u32 s{a}, s{a}, {expr}-{lab}\ns_addc_u32 s{a+1}, s{a+1}, 0')
    return a

class Tabs:
    def __init__(self, k, lane16, first, soff=None):
        self.k = k; self.lane16 = lane16; self.first = first; self.bases = {}
        self.sa = code_addr(k, f'tabs+{(first + 4) * 1024}')
        if soff is not None: k(f's_add_u32 s{self.sa}, s{self.sa}, s{soff}\ns_addc_u32 s{self.sa+1}, s{self.sa+1}, 0')
        self.cur = 0
    def load(self, dst, fr):
        k = self.k; rel = fr - self.first; grp = rel // 8
        if grp not in self.bases:
            while self.cur < grp:
                k(f's_add_u32 s{self.sa}, s{self.sa}, 8192\ns_addc_u32 s{self.sa+1}, s{self.sa+1}, 0'); self.cur += 1
            assert self.cur == grp
            b = k.v(2); self.bases[grp] = b
            k(f'v_lshl_add_u64 {V(b,2)}, {V(self.lane16,2)}, 0, {S(self.sa,2)}')
        k(f'global_load_dwordx4 {dst}, {V(self.bases[grp],2)}, off offset:{(rel % 8) * 1024 - 4096}')

def wave_id(k, dst_s, tmp_v):
    k(f'v_lshrrev_b32 v{tmp_v}, 6, v0\nv_readfirstlane_b32 s{dst_s}, v{tmp_v}')

def red16(k, regs, tmp=None):
    for pat in ('quad_perm:[1,0,3,2]', 'quad_perm:[2,3,0,1]', 'row_half_mirror', 'row_mirror'):
        for r in regs: k(f'v_add_f32_dpp v{r}, v{r}, v{r} {pat} row_mask:0xf bank_mask:0xf')
def red_swap(k, regs, tmps, which):
    for r, t in zip(regs, tmps): k(f'v_mov_b32 v{t}, v{r}')
    for r, t in zip(regs, tmps): k(f'v_permlane{which}_swap_b32 v{r}, v{t}')
    for r, t in zip(regs, tmps): k(f'v_add_f32 v{r}, v{r}, v{t}')

PF = dict(k1=(0, 0), k2=(0, 0), k3=(0, 128), k4a=(128, 243), k4=(243, 243))
def weight_prefetch(k, key, sw, wpw, lane, defer=False, tag='', ybase=0):
    lo, hi = OPT.get('pf_' + key, PF[key])
    if hi <= lo: return None
    P = k.P; a = k.s(); d = k.s(4); t = k.v()
    ns0 = k.ns; I = k.s(); g = k.s(); b = k.s()
    wd = k.L('pfwd' + key + tag); go = k.L('pfgo' + key + tag)
    k(f'''s_lshr_b32 s{I}, s2, 3
    s_sub_u32 s{I}, s{I}, {ybase}
    s_cmp_ge_u32 s{I}, {32 if wpw == 4 else wpw}
    s_cselect_b32 s{I}, 999, s{I}
    s_mul_i32 s{g}, s{sw}, {32 if wpw == 4 else wpw}
    s_add_u32 s{I}, s{I}, s{g}
    s_add_u32 s{I}, s{I}, {lo}
    s_cmp_ge_u32 s{I}, {hi}
    s_cselect_b32 s{d+2}, 0, {576*4608*2}
    s_and_b32 s{a}, s2, 7
    s_mov_b32 s{d+3}, 0x20000
    s_cmp_ge_u32 s{I}, 162
    s_cbranch_scc1 {wd}
    s_mul_i32 s{g}, s{I}, 7282
    s_lshr_b32 s{g}, s{g}, 16
    s_mul_i32 s{b}, s{g}, 9
    s_sub_u32 s{b}, s{I}, s{b}
    s_cmp_lt_u32 s{I}, 72
    s_cbranch_scc0 {go}x
    s_and_b32 s{g}, s{I}, 7
    s_lshr_b32 s{b}, s{I}, 3
    {go}x:
    s_mov_b32 s{I}, s{b}
    s_mul_i32 s{I}, s{I}, {64*9216}
    v_mul_u32_u24 v{t}, 9216, v{lane}
    s_mul_i32 s{a}, s{a}, 1152
    s_add_u32 s{a}, s{a}, s{I}
    s_lshr_b32 s{b}, s{g}, 2
    s_lshl_b32 s{b}, s{b}, 7
    s_add_u32 s{a}, s{a}, s{b}
    s_bfe_u32 s{b}, s{g}, 0x10001
    s_mul_i32 s{b}, s{b}, 640
    s_add_u32 s{a}, s{a}, s{b}
    s_bitcmp1_b32 s{g}, 0
    s_cselect_b32 s{d}, s{P['wu']}, s{P['wg']}
    s_cselect_b32 s{d+1}, s{P['wu']+1}, s{P['wg']+1}
    s_branch {go}
    {wd}:
    s_sub_u32 s{I}, s{I}, 162
    s_lshl_b32 s{I}, s{I}, 13
    s_mul_i32 s{a}, s{a}, {576*1152}
    s_add_u32 s{a}, s{a}, s{I}
    v_lshlrev_b32 v{t}, 7, v{lane}
    s_mov_b32 s{d}, s{P['wd']}
    s_mov_b32 s{d+1}, s{P['wd']+1}
    {go}:''')
    k.ns = ns0
    ld = f'buffer_load_dword v{t}, v{t}, {S(d,4)}, s{a} offen'
    if defer: return t, d, a
    k(ld)

def STAMPS_ON(): return STAMPS

class TabDMA:
    def __init__(self, k, l16, sw, first, n, ldsoff, nw=4):
        per = (n + nw - 1) // nw; assert per <= 8
        sa = code_addr(k, f'tabs+{first * 1024}'); s1 = k.s(); ad = k.v(2)
        k(f'''s_mul_i32 s{s1}, s{sw}, {per * 1024}
        s_add_u32 s{sa}, s{sa}, s{s1}
        s_addc_u32 s{sa+1}, s{sa+1}, 0
        s_add_u32 m0, s{s1}, {ldsoff}
        v_lshl_add_u64 {V(ad,2)}, {V(l16,2)}, 0, {S(sa,2)}''')
        for i in range(per):
            if i == 4: k(f'v_add_co_u32 v{ad}, vcc, 4096, v{ad}\nv_addc_co_u32 v{ad+1}, vcc, 0, v{ad+1}, vcc\ns_add_u32 m0, m0, 4096')
            k(f'global_load_lds_dwordx4 {V(ad,2)}, off offset:{1024 * (i % 4)}')
        self.count = per; self.bytes = per * nw * 1024

def row_stats(k, pairs, extra, c, acc, tmp, wide):
    pass
```

```python
from asmgen import *
import layout as LY
ARG = dict(x=0, wr=8, wi=16, wg=32, wu=40, wd=48, c=56, wmod=64, out=72, dbg=80, ws=88)
STAMPS = False
OPT = {}
IDX = {}

def begin(k, idx, ptrs):
    k.idx = idx
    if STAMPS:
        k.st0 = k.s(2); k(f's_memrealtime {S(k.st0,2)}')
        if k.name != 'k4_kernel': k.st2 = k.s(2); k.st_srd = k.s(4); k.st_tmp = k.s(1)
        if 'ws' not in ptrs: ptrs = ptrs + ['ws']
        if OPT.get('dbg'): ptrs = ptrs + ['dbg']
    k(f's_cmp_ge_u32 s2, {getattr(k, "nwg", k.grid)}\ns_cbranch_scc1 {k.L("end")}')
    P = {}
    for p in ptrs:
        P[p] = k.s(2); k(f's_load_dwordx2 {S(P[p],2)}, s[0:1], {ARG[p]}')
    k.P = P
    return P

def stamp_mid(k):
    if STAMPS:
        if not hasattr(k, 'st1'): k.st1 = k.s(2)
        k(f's_memrealtime {S(k.st1,2)}')

def mark(k):
    if not STAMPS or OPT.get('mkk', 'k4_kernel') != k.name: return
    if not hasattr(k, 'mkv'): k.mkv = k.v(); k.mks = k.s(4); k.nmk = 0
    a = k.mks; i = k.nmk; k.nmk += 1
    k(f's_memtime {S(a,2)}\ns_memrealtime {S(a+2,2)}\ns_waitcnt lgkmcnt(0)\nv_writelane_b32 v{k.mkv}, s{a}, {2*i}\nv_writelane_b32 v{k.mkv}, s{a+2}, {2*i+1}')

def mark_loop(k, cnt, vals):
    if not STAMPS: return
    if not hasattr(k, 'mtmp'): k.mtmp = k.s(4)
    a = k.mtmp
    k(f's_memtime {S(a,2)}\ns_memrealtime {S(a+2,2)}\ns_waitcnt lgkmcnt(0)')
    for v in vals:
        x = k.s(); y = k.s(); k.marks.append((x, y))
        k(f's_cmp_eq_u32 s{cnt}, {v}\ns_cselect_b32 s{x}, s{a}, s{x}\ns_cselect_b32 s{y}, s{a+2}, s{y}')

def finish(k, last=True):
    if STAMPS:
        if not hasattr(k, 'st2'):
            k.st2 = k.s(2); k.st_srd = k.s(4); k.st_tmp = k.s(1)
        if not hasattr(k, 'st1'): k.st1 = k.st0
        au = k.auto; k.auto = True
        k(f's_waitcnt vmcnt(0) lgkmcnt(0)\ns_memrealtime {S(k.st2,2)}\ns_mov_b64 exec, -1')
        k.srd(k.P["ws"], 0x20000, LY.STAMP, d=k.st_srd)
        k(f'''s_lshl_b32 s{k.st_tmp}, s2, 4
        s_add_u32 s{k.st_tmp}, s{k.st_tmp}, {k.idx * 10240}
        v_mov_b32 v4, s{k.st0}
        v_mov_b32 v5, s{k.st1}
        v_mov_b32 v6, s{k.st2}
        v_mov_b32 v7, 0
        v_mov_b32 v8, s{k.st_tmp}
        buffer_store_dwordx4 v[4:7], v8, {S(k.st_srd,4)}, 0 offen''')
        if OPT.get('amp') and k.name == 'k4_kernel':
            (ia, ja), (ib, jb), K_ = OPT['amp']; wg = 140
            k(f'''s_waitcnt vmcnt(0)
            s_barrier
            v_mov_b32 v12, {ia * 10240 + wg * 16 + 4 * ja}
            v_mov_b32 v13, {ib * 10240 + wg * 16 + 4 * jb}
            s_cmp_lg_u32 s2, {wg}
            s_cbranch_scc1 {k.L("ampx")}
            buffer_load_dword v14, v12, {S(k.st_srd,4)}, 0 offen sc1
            buffer_load_dword v15, v13, {S(k.st_srd,4)}, 0 offen sc1
            s_waitcnt vmcnt(0)
            v_sub_u32 v14, v15, v14
            v_readfirstlane_b32 s{k.st_tmp}, v14
            s_min_u32 s{k.st_tmp}, s{k.st_tmp}, 5000
            s_mul_i32 s{k.st_tmp}, s{k.st_tmp}, {K_}
            {k.L("amp")}:
            s_memrealtime {S(k.st0,2)}
            s_waitcnt lgkmcnt(0)
            s_sub_u32 s{k.st0}, s{k.st0}, s{k.st2}
            s_cmp_lt_u32 s{k.st0}, s{k.st_tmp}
            s_cbranch_scc1 {k.L("amp")}
            {k.L("ampx")}:''')
        if OPT.get('dbg') and k.idx == 3:
            k(f'''s_waitcnt vmcnt(0)
            v_mbcnt_lo_u32_b32 v12, -1, 0
            v_and_b32 v12, 15, v12
            v_lshrrev_b32 v13, 2, v12
            v_mul_u32_u24 v13, 10240, v13
            v_and_b32 v14, 3, v12
            v_lshl_add_u32 v13, v14, 2, v13
            s_mov_b32 s{k.st_tmp}, {16 * OPT['dbg']}
            buffer_load_dword v15, v13, {S(k.st_srd,4)}, s{k.st_tmp} offen sc1
            v_lshlrev_b32 v12, 2, v12''')
            k.srd(k.P['dbg'], 256, d=k.st_srd)
            k(f'''s_cmp_eq_u32 s2, {OPT['dbg']}
            s_cselect_b32 s{k.st_tmp}, 0, 0x40000000
            buffer_store_dword v15, v12, {S(k.st_srd,4)}, s{k.st_tmp} offen''')
        elif hasattr(k, 'mkv'):
            k(f'''s_and_b32 s{k.st_tmp}, s2, 255
            s_lshl_b32 s{k.st_tmp}, s{k.st_tmp}, 8
            s_add_u32 s{k.st_tmp}, s{k.st_tmp}, {0x10000}
            v_mbcnt_lo_u32_b32 v12, -1, 0
            v_mbcnt_hi_u32_b32 v12, -1, v12
            v_lshlrev_b32 v12, 2, v12
            s_mov_b32 exec_lo, {((1 << (2 * k.nmk)) - 1) & 0xffffffff}
            s_mov_b32 exec_hi, {((1 << (2 * k.nmk)) - 1) >> 32}
            v_readfirstlane_b32 s{k.st2}, v0
            s_cmp_ge_u32 s{k.st2}, 64
            s_cselect_b32 s{k.st_tmp}, 0x40000000, s{k.st_tmp}
            buffer_store_dword v{k.mkv}, v12, {S(k.st_srd,4)}, s{k.st_tmp} offen''')
        k.auto = au
    if last: k(f'{k.L("end")}:')
    k('s_endpgm')

_pc = [0]
def code_addr(k, expr, back=False):
    a = k.s(2); _pc[0] += 1; lab = k.L(f'pc{_pc[0]}')
    if back: k(f's_getpc_b64 {S(a,2)}\n{lab}:\ns_sub_u32 s{a}, s{a}, {lab}-{expr}\ns_subb_u32 s{a+1}, s{a+1}, 0')
    else: k(f's_getpc_b64 {S(a,2)}\n{lab}:\ns_add_u32 s{a}, s{a}, {expr}-{lab}\ns_addc_u32 s{a+1}, s{a+1}, 0')
    return a

class Tabs:
    def __init__(self, k, lane16, first, soff=None):
        self.k = k; self.lane16 = lane16; self.first = first; self.bases = {}
        self.sa = code_addr(k, f'tabs+{(first + 4) * 1024}')
        if soff is not None: k(f's_add_u32 s{self.sa}, s{self.sa}, s{soff}\ns_addc_u32 s{self.sa+1}, s{self.sa+1}, 0')
        self.cur = 0
    def load(self, dst, fr):
        k = self.k; rel = fr - self.first; grp = rel // 8
        if grp not in self.bases:
            while self.cur < grp:
                k(f's_add_u32 s{self.sa}, s{self.sa}, 8192\ns_addc_u32 s{self.sa+1}, s{self.sa+1}, 0'); self.cur += 1
            assert self.cur == grp
            b = k.v(2); self.bases[grp] = b
            k(f'v_lshl_add_u64 {V(b,2)}, {V(self.lane16,2)}, 0, {S(self.sa,2)}')
        k(f'global_load_dwordx4 {dst}, {V(self.bases[grp],2)}, off offset:{(rel % 8) * 1024 - 4096}')

def wave_id(k, dst_s, tmp_v):
    k(f'v_lshrrev_b32 v{tmp_v}, 6, v0\nv_readfirstlane_b32 s{dst_s}, v{tmp_v}')

def red16(k, regs, tmp=None):
    for pat in ('quad_perm:[1,0,3,2]', 'quad_perm:[2,3,0,1]', 'row_half_mirror', 'row_mirror'):
        for r in regs: k(f'v_add_f32_dpp v{r}, v{r}, v{r} {pat} row_mask:0xf bank_mask:0xf')
def red_swap(k, regs, tmps, which):
    for r, t in zip(regs, tmps): k(f'v_mov_b32 v{t}, v{r}')
    for r, t in zip(regs, tmps): k(f'v_permlane{which}_swap_b32 v{r}, v{t}')
    for r, t in zip(regs, tmps): k(f'v_add_f32 v{r}, v{r}, v{t}')

PF = dict(k1=(0, 0), k1b=(0, 0), k1c=(0, 0), k2=(0, 0), k3=(0, 96), k4a=(96, 224), k4=(224, 243))
def weight_prefetch(k, key, sw, wpw, lane, defer=False, tag='', ybase=0, vreg=None):
    lo, hi = OPT.get('pf_' + key, PF[key])
    if hi <= lo: return None if defer else False
    P = k.P; a = k.s(); d = k.s(4); t = k.v() if vreg is None else vreg
    ns0 = k.ns; I = k.s(); g = k.s(); b = k.s()
    wd = k.L('pfwd' + key + tag); go = k.L('pfgo' + key + tag)
    k(f'''s_lshr_b32 s{I}, s2, 3
    s_sub_u32 s{I}, s{I}, {ybase}
    s_cmp_ge_u32 s{I}, {32 if wpw == 4 else wpw}
    s_cselect_b32 s{I}, 999, s{I}
    s_mul_i32 s{g}, s{sw}, {32 if wpw == 4 else wpw}
    s_add_u32 s{I}, s{I}, s{g}
    s_add_u32 s{I}, s{I}, {lo}
    s_cmp_ge_u32 s{I}, {hi}
    s_cselect_b32 s{d+2}, 0, {576*4608*2}
    s_and_b32 s{a}, s2, 7
    s_mov_b32 s{d+3}, 0x20000
    s_cmp_ge_u32 s{I}, 162
    s_cbranch_scc1 {wd}
    s_mul_i32 s{g}, s{I}, 7282
    s_lshr_b32 s{g}, s{g}, 16
    s_mul_i32 s{b}, s{g}, 9
    s_sub_u32 s{b}, s{I}, s{b}
    s_cmp_lt_u32 s{I}, 72
    s_cbranch_scc0 {go}x
    s_and_b32 s{g}, s{I}, 7
    s_lshr_b32 s{b}, s{I}, 3
    {go}x:
    s_mov_b32 s{I}, s{b}
    s_mul_i32 s{I}, s{I}, {64*9216}
    v_mul_u32_u24 v{t}, 9216, v{lane}
    s_mul_i32 s{a}, s{a}, 1152
    s_add_u32 s{a}, s{a}, s{I}
    s_lshr_b32 s{b}, s{g}, 2
    s_lshl_b32 s{b}, s{b}, 7
    s_add_u32 s{a}, s{a}, s{b}
    s_bfe_u32 s{b}, s{g}, 0x10001
    s_mul_i32 s{b}, s{b}, 640
    s_add_u32 s{a}, s{a}, s{b}
    s_bitcmp1_b32 s{g}, 0
    s_cselect_b32 s{d}, s{P['wu']}, s{P['wg']}
    s_cselect_b32 s{d+1}, s{P['wu']+1}, s{P['wg']+1}
    s_branch {go}
    {wd}:
    s_sub_u32 s{I}, s{I}, 162
    s_lshl_b32 s{I}, s{I}, 13
    s_mul_i32 s{a}, s{a}, {576*1152}
    s_add_u32 s{a}, s{a}, s{I}
    v_lshlrev_b32 v{t}, 7, v{lane}
    s_mov_b32 s{d}, s{P['wd']}
    s_mov_b32 s{d+1}, s{P['wd']+1}
    {go}:''')
    k.ns = ns0
    ld = f'buffer_load_dword v{t}, v{t}, {S(d,4)}, s{a} offen'
    if defer: return t, d, a
    k(ld)

def STAMPS_ON(): return STAMPS

class TabDMA:
    def __init__(self, k, l16, sw, first, n, ldsoff, nw=4):
        per = (n + nw - 1) // nw; assert per <= 8
        sa = code_addr(k, f'tabs+{first * 1024}'); s1 = k.s(); ad = k.v(2)
        k(f'''s_mul_i32 s{s1}, s{sw}, {per * 1024}
        s_add_u32 s{sa}, s{sa}, s{s1}
        s_addc_u32 s{sa+1}, s{sa+1}, 0
        s_add_u32 m0, s{s1}, {ldsoff}
        v_lshl_add_u64 {V(ad,2)}, {V(l16,2)}, 0, {S(sa,2)}''')
        for i in range(per):
            if i == 4: k(f'v_add_co_u32 v{ad}, vcc, 4096, v{ad}\nv_addc_co_u32 v{ad+1}, vcc, 0, v{ad+1}, vcc\ns_add_u32 m0, m0, 4096')
            k(f'global_load_lds_dwordx4 {V(ad,2)}, off offset:{1024 * (i % 4)}')
        self.count = per; self.bytes = per * nw * 1024

def row_stats(k, pairs, extra, c, acc, tmp, wide):
    pass
```

```python
from asmgen import *
import layout as LY
ARG = dict(x=0, wr=8, wi=16, wg=32, wu=40, wd=48, c=56, wmod=64, out=72, dbg=80, ws=88)
STAMPS = False
OPT = {}
IDX = {}

def begin(k, idx, ptrs):
    k.idx = idx
    if OPT.get('warm', 0) and k.name in ('k2_kernel', 'k4_kernel'):
        k(f's_cbranch_execz warm_{k.name}')
    if STAMPS:
        k.st0 = k.s(2); k(f's_memrealtime {S(k.st0,2)}')
        if k.name != 'k4_kernel': k.st2 = k.s(2); k.st_srd = k.s(4); k.st_tmp = k.s(1)
        if 'ws' not in ptrs: ptrs = ptrs + ['ws']
        if OPT.get('dbg'): ptrs = ptrs + ['dbg']
    k(f's_cmp_ge_u32 s2, {getattr(k, "nwg", k.grid)}\ns_cbranch_scc1 {k.L("end")}')
    P = {}
    for p in ptrs:
        P[p] = k.s(2); k(f's_load_dwordx2 {S(P[p],2)}, s[0:1], {ARG[p]}')
    k.P = P
    return P

def stamp_mid(k):
    if STAMPS:
        if not hasattr(k, 'st1'): k.st1 = k.s(2)
        k(f's_memrealtime {S(k.st1,2)}')

def mark(k):
    if not STAMPS or OPT.get('mkk', 'k4_kernel') != k.name: return
    if not hasattr(k, 'mkv'): k.mkv = k.v(); k.mks = k.s(4); k.nmk = 0
    a = k.mks; i = k.nmk; k.nmk += 1
    k(f's_memtime {S(a,2)}\ns_memrealtime {S(a+2,2)}\ns_waitcnt lgkmcnt(0)\nv_writelane_b32 v{k.mkv}, s{a}, {2*i}\nv_writelane_b32 v{k.mkv}, s{a+2}, {2*i+1}')

def mark_loop(k, cnt, vals):
    if not STAMPS: return
    if not hasattr(k, 'mtmp'): k.mtmp = k.s(4)
    a = k.mtmp
    k(f's_memtime {S(a,2)}\ns_memrealtime {S(a+2,2)}\ns_waitcnt lgkmcnt(0)')
    for v in vals:
        x = k.s(); y = k.s(); k.marks.append((x, y))
        k(f's_cmp_eq_u32 s{cnt}, {v}\ns_cselect_b32 s{x}, s{a}, s{x}\ns_cselect_b32 s{y}, s{a+2}, s{y}')

def finish(k, last=True):
    if STAMPS:
        if not hasattr(k, 'st2'):
            k.st2 = k.s(2); k.st_srd = k.s(4); k.st_tmp = k.s(1)
        if not hasattr(k, 'st1'): k.st1 = k.st0
        au = k.auto; k.auto = True
        k(f's_waitcnt vmcnt(0) lgkmcnt(0)\ns_memrealtime {S(k.st2,2)}\ns_mov_b64 exec, -1')
        k.srd(k.P["ws"], 0x20000, LY.STAMP, d=k.st_srd)
        k(f'''s_lshl_b32 s{k.st_tmp}, s2, 4
        s_add_u32 s{k.st_tmp}, s{k.st_tmp}, {k.idx * 10240}
        v_mov_b32 v4, s{k.st0}
        v_mov_b32 v5, s{k.st1}
        v_mov_b32 v6, s{k.st2}
        v_mov_b32 v7, 0
        v_mov_b32 v8, s{k.st_tmp}
        buffer_store_dwordx4 v[4:7], v8, {S(k.st_srd,4)}, 0 offen''')
        if OPT.get('amp') and k.name == 'k4_kernel':
            (ia, ja), (ib, jb), K_ = OPT['amp']; wg = 140
            k(f'''s_waitcnt vmcnt(0)
            s_barrier
            v_mov_b32 v12, {ia * 10240 + wg * 16 + 4 * ja}
            v_mov_b32 v13, {ib * 10240 + wg * 16 + 4 * jb}
            s_cmp_lg_u32 s2, {wg}
            s_cbranch_scc1 {k.L("ampx")}
            buffer_load_dword v14, v12, {S(k.st_srd,4)}, 0 offen sc1
            buffer_load_dword v15, v13, {S(k.st_srd,4)}, 0 offen sc1
            s_waitcnt vmcnt(0)
            v_sub_u32 v14, v15, v14
            v_readfirstlane_b32 s{k.st_tmp}, v14
            s_min_u32 s{k.st_tmp}, s{k.st_tmp}, 5000
            s_mul_i32 s{k.st_tmp}, s{k.st_tmp}, {K_}
            {k.L("amp")}:
            s_memrealtime {S(k.st0,2)}
            s_waitcnt lgkmcnt(0)
            s_sub_u32 s{k.st0}, s{k.st0}, s{k.st2}
            s_cmp_lt_u32 s{k.st0}, s{k.st_tmp}
            s_cbranch_scc1 {k.L("amp")}
            {k.L("ampx")}:''')
        if OPT.get('dbg') and k.idx == 3:
            k(f'''s_waitcnt vmcnt(0)
            v_mbcnt_lo_u32_b32 v12, -1, 0
            v_and_b32 v12, 15, v12
            v_lshrrev_b32 v13, 2, v12
            v_mul_u32_u24 v13, 10240, v13
            v_and_b32 v14, 3, v12
            v_lshl_add_u32 v13, v14, 2, v13
            s_mov_b32 s{k.st_tmp}, {16 * OPT['dbg']}
            buffer_load_dword v15, v13, {S(k.st_srd,4)}, s{k.st_tmp} offen sc1
            v_lshlrev_b32 v12, 2, v12''')
            k.srd(k.P['dbg'], 256, d=k.st_srd)
            k(f'''s_cmp_eq_u32 s2, {OPT['dbg']}
            s_cselect_b32 s{k.st_tmp}, 0, 0x40000000
            buffer_store_dword v15, v12, {S(k.st_srd,4)}, s{k.st_tmp} offen''')
        elif hasattr(k, 'mkv'):
            k(f'''s_and_b32 s{k.st_tmp}, s2, 255
            s_lshl_b32 s{k.st_tmp}, s{k.st_tmp}, 8
            s_add_u32 s{k.st_tmp}, s{k.st_tmp}, {0x10000}
            v_mbcnt_lo_u32_b32 v12, -1, 0
            v_mbcnt_hi_u32_b32 v12, -1, v12
            v_lshlrev_b32 v12, 2, v12
            s_mov_b32 exec_lo, {((1 << (2 * k.nmk)) - 1) & 0xffffffff}
            s_mov_b32 exec_hi, {((1 << (2 * k.nmk)) - 1) >> 32}
            v_readfirstlane_b32 s{k.st2}, v0
            s_cmp_ge_u32 s{k.st2}, 64
            s_cselect_b32 s{k.st_tmp}, 0x40000000, s{k.st_tmp}
            buffer_store_dword v{k.mkv}, v12, {S(k.st_srd,4)}, s{k.st_tmp} offen''')
        k.auto = au
    if last: k(f'{k.L("end")}:')
    k('s_endpgm')

_pc = [0]
def code_addr(k, expr, back=False):
    a = k.s(2); _pc[0] += 1; lab = k.L(f'pc{_pc[0]}')
    if back: k(f's_getpc_b64 {S(a,2)}\n{lab}:\ns_sub_u32 s{a}, s{a}, {lab}-{expr}\ns_subb_u32 s{a+1}, s{a+1}, 0')
    else: k(f's_getpc_b64 {S(a,2)}\n{lab}:\ns_add_u32 s{a}, s{a}, {expr}-{lab}\ns_addc_u32 s{a+1}, s{a+1}, 0')
    return a

class Tabs:
    def __init__(self, k, lane16, first, soff=None):
        self.k = k; self.lane16 = lane16; self.first = first; self.bases = {}
        self.sa = code_addr(k, f'tabs+{(first + 4) * 1024}')
        if soff is not None: k(f's_add_u32 s{self.sa}, s{self.sa}, s{soff}\ns_addc_u32 s{self.sa+1}, s{self.sa+1}, 0')
        self.cur = 0
    def load(self, dst, fr):
        k = self.k; rel = fr - self.first; grp = rel // 8
        if grp not in self.bases:
            while self.cur < grp:
                k(f's_add_u32 s{self.sa}, s{self.sa}, 8192\ns_addc_u32 s{self.sa+1}, s{self.sa+1}, 0'); self.cur += 1
            assert self.cur == grp
            b = k.v(2); self.bases[grp] = b
            k(f'v_lshl_add_u64 {V(b,2)}, {V(self.lane16,2)}, 0, {S(self.sa,2)}')
        k(f'global_load_dwordx4 {dst}, {V(self.bases[grp],2)}, off offset:{(rel % 8) * 1024 - 4096}')

def wave_id(k, dst_s, tmp_v):
    k(f'v_lshrrev_b32 v{tmp_v}, 6, v0\nv_readfirstlane_b32 s{dst_s}, v{tmp_v}')

def red16(k, regs, tmp=None):
    for pat in ('quad_perm:[1,0,3,2]', 'quad_perm:[2,3,0,1]', 'row_half_mirror', 'row_mirror'):
        for r in regs: k(f'v_add_f32_dpp v{r}, v{r}, v{r} {pat} row_mask:0xf bank_mask:0xf')
def red_swap(k, regs, tmps, which):
    for r, t in zip(regs, tmps): k(f'v_mov_b32 v{t}, v{r}')
    for r, t in zip(regs, tmps): k(f'v_permlane{which}_swap_b32 v{r}, v{t}')
    for r, t in zip(regs, tmps): k(f'v_add_f32 v{r}, v{r}, v{t}')

PF = dict(k1=(0, 0), k1b=(0, 0), k1c=(0, 0), k2=(84, 116), k3=(0, 84), k3b=(0, 0), k4a=(116, 243), k4=(243, 243))
def weight_prefetch(k, key, sw, wpw, lane, defer=False, tag='', ybase=0, vreg=None):
    lo, hi = OPT.get('pf_' + key, PF[key])
    if hi <= lo: return None if defer else False
    P = k.P; a = k.s(); d = k.s(4); t = k.v() if vreg is None else vreg
    ns0 = k.ns; I = k.s(); g = k.s(); b = k.s()
    wd = k.L('pfwd' + key + tag); go = k.L('pfgo' + key + tag)
    k(f'''s_lshr_b32 s{I}, s2, 3
    s_sub_u32 s{I}, s{I}, {ybase}
    s_cmp_ge_u32 s{I}, {32 if wpw == 4 else wpw}
    s_cselect_b32 s{I}, 999, s{I}
    s_mul_i32 s{g}, s{sw}, {32 if wpw == 4 else wpw}
    s_add_u32 s{I}, s{I}, s{g}
    s_add_u32 s{I}, s{I}, {lo}
    s_cmp_ge_u32 s{I}, {hi}
    s_cselect_b32 s{d+2}, 0, {576*4608*2}
    s_and_b32 s{a}, s2, 7
    s_mov_b32 s{d+3}, 0x20000
    s_cmp_ge_u32 s{I}, 162
    s_cbranch_scc1 {wd}
    s_mul_i32 s{g}, s{I}, 7282
    s_lshr_b32 s{g}, s{g}, 16
    s_mul_i32 s{b}, s{g}, 9
    s_sub_u32 s{b}, s{I}, s{b}
    s_cmp_lt_u32 s{I}, 72
    s_cbranch_scc0 {go}x
    s_and_b32 s{g}, s{I}, 7
    s_lshr_b32 s{b}, s{I}, 3
    {go}x:
    s_mov_b32 s{I}, s{b}
    s_mul_i32 s{I}, s{I}, {64*9216}
    v_mul_u32_u24 v{t}, 9216, v{lane}
    s_mul_i32 s{a}, s{a}, 1152
    s_add_u32 s{a}, s{a}, s{I}
    s_lshr_b32 s{b}, s{g}, 2
    s_lshl_b32 s{b}, s{b}, 7
    s_add_u32 s{a}, s{a}, s{b}
    s_bfe_u32 s{b}, s{g}, 0x10001
    s_mul_i32 s{b}, s{b}, 640
    s_add_u32 s{a}, s{a}, s{b}
    s_bitcmp1_b32 s{g}, 0
    s_cselect_b32 s{d}, s{P['wu']}, s{P['wg']}
    s_cselect_b32 s{d+1}, s{P['wu']+1}, s{P['wg']+1}
    s_branch {go}
    {wd}:
    s_sub_u32 s{I}, s{I}, 162
    s_lshl_b32 s{I}, s{I}, 13
    s_mul_i32 s{a}, s{a}, {576*1152}
    s_add_u32 s{a}, s{a}, s{I}
    v_lshlrev_b32 v{t}, 7, v{lane}
    s_mov_b32 s{d}, s{P['wd']}
    s_mov_b32 s{d+1}, s{P['wd']+1}
    {go}:''')
    k.ns = ns0
    ld = f'buffer_load_dword v{t}, v{t}, {S(d,4)}, s{a} offen'
    if defer: return t, d, a
    k(ld)

def STAMPS_ON(): return STAMPS

class TabDMA:
    def __init__(self, k, l16, sw, first, n, ldsoff, nw=4):
        per = (n + nw - 1) // nw; assert per <= 8
        sa = code_addr(k, f'tabs+{first * 1024}'); s1 = k.s(); ad = k.v(2)
        k(f'''s_mul_i32 s{s1}, s{sw}, {per * 1024}
        s_add_u32 s{sa}, s{sa}, s{s1}
        s_addc_u32 s{sa+1}, s{sa+1}, 0
        s_add_u32 m0, s{s1}, {ldsoff}
        v_lshl_add_u64 {V(ad,2)}, {V(l16,2)}, 0, {S(sa,2)}''')
        for i in range(per):
            if i == 4: k(f'v_add_co_u32 v{ad}, vcc, 4096, v{ad}\nv_addc_co_u32 v{ad+1}, vcc, 0, v{ad+1}, vcc\ns_add_u32 m0, m0, 4096')
            k(f'global_load_lds_dwordx4 {V(ad,2)}, off offset:{1024 * (i % 4)}')
        self.count = per; self.bytes = per * nw * 1024

def row_stats(k, pairs, extra, c, acc, tmp, wide):
    pass

def warm_entry(k, name):
    if OPT.get('warm', 0): k(f's_mov_b64 exec, 0\ns_branch {name}\nwarm_{name}:\ns_mov_b64 exec, -1')
```
